```python
import torch

def _softmax(x, axis=-1):
    return torch.softmax(x, dim=axis)
def _gelu(x):
    return torch.nn.functional.gelu(x, approximate="tanh")
def _silu(x):
    return torch.nn.functional.silu(x)
def _sigmoid(x):
    return torch.sigmoid(x)
def _layernorm(x, axis=-1, eps=1e-5):
    m = x.mean(dim=axis, keepdim=True)
    v = x.var(dim=axis, keepdim=True, unbiased=False)
    return (x - m) / torch.sqrt(v + eps)
def _scatter_add(tgt, idx, src, axis=0):
    return tgt.clone().index_add_(axis, idx, src)
def _segment_sum(src, seg, n):
    out = torch.zeros((n,) + src.shape[1:], dtype=src.dtype)
    return out.index_add_(0, seg, src)
def _pad(x, pw):
    flat = tuple(v for pair in reversed(pw) for v in pair)
    return torch.nn.functional.pad(x, flat)

kernel_name = 'standalone__gqa_block_cached__near_ridge'

def setup_inputs():

    _w = (lambda a: (lambda t: t.to(torch.bfloat16) if t.is_floating_point() else t)(torch.as_tensor(a)))
    B, Sq, D = 32, 96, 448
    Hq, Hkv, Sk, Dh = 16, 8, 512, 256
    assert Hq % Hkv == 0, (Hq, Hkv)
    return {
        "x": _w((lambda *s: torch.randn(*s, dtype=torch.bfloat16) * 0.8)(B, Sq, D)),
        "k_cache": _w((lambda *s: torch.randn(*s, dtype=torch.bfloat16) * 0.8)(B, Hkv, Sk, Dh)),
        "v_cache": _w((lambda *s: torch.randn(*s, dtype=torch.bfloat16) * 0.05)(B, Hkv, Sk, Dh)),
        "wq": _w((lambda *s: torch.randn(*s, dtype=torch.bfloat16) * 0.8)(D, Hq * Dh) * (D ** -0.5)),
        "wo": _w((lambda *s: torch.randn(*s, dtype=torch.bfloat16) * 0.05)(Hq * Dh, D) * ((Hq * Dh) ** -0.5)),
    }

def reference(x, k_cache, v_cache, wq, wo):
    B, Sq, D = x.shape
    Hq, Dh = 16, 256
    Hkv = k_cache.shape[1]
    rep = Hq // Hkv
    q = (lambda x, *d: x.permute(*d))((x @ wq).reshape(B, Sq, Hq, Dh), 0, 2, 1, 3)
    k = (lambda x, n, axis: torch.repeat_interleave(x, n, dim=axis))(k_cache, rep, axis=1)
    v = (lambda x, n, axis: torch.repeat_interleave(x, n, dim=axis))(v_cache, rep, axis=1)
    scores = torch.einsum("bhqd,bhkd->bhqk", q, k) * (Dh ** -0.5)
    p = _softmax(scores, axis=-1)
    o = torch.einsum("bhqk,bhkd->bhqd", p, v)
    return (lambda x, *d: x.permute(*d))(o, 0, 2, 1, 3).reshape(B, Sq, Hq * Dh) @ wo
```

```python
import re, sys

class Ins:
    def __init__(self, txt, cost=1, tag=None, lg=None, vm=None):
        self.txt = txt; self.cost = cost; self.tag = tag
        self.lg = lg; self.vm = vm
        self.kind = classify(txt)
    def __repr__(self): return self.txt

TRANS = ("v_exp_f32", "v_rcp_f32", "v_log_f32", "v_rsq_f32", "v_sqrt_f32")
def classify(t):
    m = t.split()[0] if t.strip() else ""
    if m.endswith(":"): return "label"
    if m.startswith(";") or m.startswith("."): return "raw"
    if m.startswith("v_mfma"): return "mfma"
    if m in TRANS: return "trans"
    if m.startswith("v_"): return "valu"
    if m.startswith("ds_"): return "ds"
    if m.startswith("buffer_") or m.startswith("global_"): return "vmem"
    if m == "s_waitcnt" or m == "WAIT": return "wait"
    if m == "s_barrier": return "bar"
    if m in ("s_load_dwordx16", "s_load_dwordx2", "s_load_dwordx4", "s_memtime", "s_memrealtime", "s_load_dword", "s_load_dwordx8"): return "smem"
    if m.startswith("s_cbranch") or m == "s_branch": return "br"
    if m.startswith("s_"): return "salu"
    raise ValueError("unknown instr " + t)

def W(lg=None, vm=None):
    return Ins("WAIT", lg=lg, vm=vm)

class Item:
    def __init__(self, ins, e, d, cost=None):
        if not isinstance(ins, list): ins = [ins]
        self.ins = [i if isinstance(i, Ins) else Ins(i) for i in ins]
        self.e = e; self.d = d
        self.cost = cost if cost is not None else sum(i.cost for i in self.ins)

def schedule(mfmas, sync, streams, cap=2, name="", verbose=False):
    n = len(mfmas)
    out = []
    heads = [0] * len(streams)
    over = 0
    pre = {}; post = {}
    for it in sync:
        assert -1 <= it.e < n, (name, it.e, n)
        d = pre if any(i.kind == "bar" for i in it.ins) else post
        d.setdefault(it.e, []).append(it)
    overs = []
    for g in range(-1, n):
        if g >= 0: out.append(mfmas[g])
        room = cap if g >= 0 else 0
        for it in pre.get(g, []): out.extend(it.ins); room -= it.cost
        for it in post.get(g, []): room -= it.cost
        while True:
            best = None
            for si, st in enumerate(streams):
                if heads[si] < len(st):
                    it = st[heads[si]]
                    if it.e <= g and ((it.cost <= room) or it.d <= g):
                        key = (it.d, si)
                        if best is None or key < best[0]: best = (key, si)
            if best is None: break
            si = best[1]; it = streams[si][heads[si]]; heads[si] += 1
            out.extend(it.ins)
            room -= it.cost
        for it in post.get(g, []): out.extend(it.ins)
        if room < 0: over += -room; overs.append((g, -room))
    left = 0
    for si, st in enumerate(streams):
        while heads[si] < len(st):
            out.extend(st[heads[si]].ins); left += st[heads[si]].cost; heads[si] += 1
    if verbose: print(f"; sched {name}: mfma {n} overflow {over} leftover {left} at {overs[:24]}", file=sys.stderr)
    return out

def tighten(stream):
    d = 10**9
    for it in reversed(stream):
        d = min(d, it.d); it.d = d
    return stream

def resolve_waits(prog):
    for i, ins in enumerate(prog):
        if ins.txt != "WAIT": continue
        parts = []
        for which, kinds, mx in (("vm", ("vmem",), 63), ("lg", ("ds",), 15)):
            tgt = getattr(ins, which)
            if tgt is None: continue
            if isinstance(tgt, int): n = tgt
            else:
                tags = tgt if isinstance(tgt, (list, tuple)) else [tgt]
                n = None
                cnt = 0
                for k in range(i - 1, -1, -1):
                    p = prog[k]
                    if p.kind in kinds:
                        if p.tag in tags: n = cnt; break
                        cnt += 1
                    if which == "lg" and p.kind == "smem": raise ValueError("smem inside counted lgkm window")
                if n is None: raise ValueError(f"wait target {tgt} not found")
                n = min(n, mx)
            parts.append(("vmcnt(%d)" if which == "vm" else "lgkmcnt(%d)") % n)
        ins.txt = "s_waitcnt " + " ".join(parts)

REG = re.compile(r"\b([vas])\[(\d+):(\d+)\]|\b([vas])(\d+)\b|\b(vcc|m0|exec|scc)\b")
def regs_of(op):
    r = set()
    for m in REG.finditer(op):
        if m.group(1): r |= {(m.group(1), k) for k in range(int(m.group(2)), int(m.group(3)) + 1)}
        elif m.group(4): r.add((m.group(4), int(m.group(5))))
        else: r.add((m.group(6), 0))
    return r

def rw(ins):
    t = ins.txt.split(";")[0].strip()
    m = t.split()[0]
    rest = t[len(m):].strip()
    ops = [o.strip() for o in rest.split(",")] if rest else []
    k = ins.kind
    R, Wr = set(), set()
    allr = [regs_of(o) for o in ops]
    if k == "mfma":
        Wr = allr[0]; R = allr[1] | allr[2] | allr[3]
    elif k == "ds":
        if m.startswith("ds_read"): Wr = allr[0]; R = set().union(*allr[1:])
        else: R = set().union(*allr)
    elif k == "vmem":
        if " lds" in t: R = set().union(*allr) | {("m0", 0)}
        elif m.startswith("buffer_load"): Wr = allr[0]; R = set().union(*allr[1:])
        else: R = set().union(*allr)
    elif k in ("valu", "trans"):
        if "swap" in m: Wr = allr[0] | allr[1]; R = set(Wr)
        else:
            Wr = allr[0]; R = set().union(*allr[1:]) if len(allr) > 1 else set()
            if m.startswith("v_cndmask") and len(ops) == 3: R.add(("vcc", 0))
            if m.startswith("v_fmac") or m.startswith("v_dot2c"): R |= Wr
    elif k == "salu":
        if m.startswith("s_cmp") or m in ("s_nop", "s_sleep", "s_setprio", "s_endpgm"): R = set().union(*allr) if allr else set()
        else:
            Wr = allr[0]; R = set().union(*allr[1:]) if len(allr) > 1 else set()
    elif k == "smem":
        Wr = allr[0]; R = set().union(*allr[1:]) if len(allr) > 1 else set()
    elif k == "br":
        if "vcc" in m: R = {("vcc", 0)}
    return R, Wr

def states(ins):
    if ins.kind in ("label", "raw"): return 0
    if ins.txt.startswith("s_nop"): return int(ins.txt.split()[1]) + 1
    return 1

def check(prog, name=""):
    errs = []
    info = [(i, rw(i)) for i in prog]
    pend_ds = []; pend_vm = []
    for n, (ins, (R, Wr)) in enumerate(info):
        k = ins.kind
        if k in ("label", "raw"): continue
        if k == "wait":
            mv = re.search(r"vmcnt\((\d+)\)", ins.txt); ml = re.search(r"lgkmcnt\((\d+)\)", ins.txt)
            if mv:
                c = int(mv.group(1)); pend_vm = pend_vm[len(pend_vm) - c:] if c < len(pend_vm) else pend_vm
                if c == 0: pend_vm = []
            if ml:
                c = int(ml.group(1)); pend_ds = pend_ds[len(pend_ds) - c:] if c < len(pend_ds) else pend_ds
                if c == 0: pend_ds = []
            continue
        touch = R | Wr
        for lst, nm in ((pend_ds, "ds"), (pend_vm, "vm")):
            for (pi, pw) in lst:
                if pw & touch: errs.append(f"{name}[{n}] {ins.txt}  touches pending {nm} dest of: {prog[pi].txt}")
        if k == "ds" or k == "smem": pend_ds.append((n, Wr))
        if k == "vmem": pend_vm.append((n, Wr))
        if len(pend_vm) > 63: errs.append(f"{name}[{n}] more than 63 vmem outstanding")
        dist = 0
        for j in range(n - 1, max(-1, n - 40), -1):
            p, (pR, pW) = info[j]
            if p.kind in ("label", "raw"): continue
            if dist >= 12: break
            need = 0
            pv = p.kind in ("valu", "trans")
            if pv and k == "mfma" and (pW & R): need = 2
            if p.kind == "mfma":
                if k in ("valu", "trans") and (pW & touch): need = 8
                if k in ("ds", "vmem") and (pW & touch): need = 8
                if k == "mfma":
                    ops = [o.strip() for o in ins.txt.split(None, 1)[1].split(",")]
                    if pW & (regs_of(ops[1]) | regs_of(ops[2])): need = 8
                    c = regs_of(ops[3])
                    if (pW & c) and pW != c: need = max(need, 6)
                    if (pW & Wr) and not (pW == c and pW == Wr): need = max(need, 6)
                if k in ("valu", "trans"):
                    pops = [o.strip() for o in p.txt.split(None, 1)[1].split(",")]
                    if regs_of(pops[3]) & Wr: need = max(need, 3)
            if p.kind == "trans" and k == "valu" and (pW & R): need = max(need, 1)
            if pv and "permlane" in ins.txt and (pW & R): need = max(need, 2)
            if pv and "readfirstlane" in ins.txt and (pW & R): need = max(need, 1)
            sW = {r for r in pW if r[0] in ("s", "vcc")}
            if pv and sW:
                if k in ("valu", "trans") and (sW & R): need = max(need, 2)
                if k == "vmem" and (sW & R): need = max(need, 5)
            if p.kind == "salu" and ("m0", 0) in pW and k == "vmem" and ("m0", 0) in R: need = max(need, 1)
            if p.kind == "vmem" and "store_dwordx4" in p.txt:
                data = regs_of(p.txt.split(None, 1)[1].split(",")[0])
                if data & Wr: need = max(need, 2)
            if need > dist: errs.append(f"{name}[{n}] {ins.txt}  needs {need} states after [{j}] {p.txt} (has {dist})")
            dist += states(p)
    return errs
```

```python
import sys, math, struct
from asmlib import *

KN = "standalone__gqa_block_cached__near_ridge_kernel"
OPT = dict(stamps=False, nt_kv=True, nt_x=False, nt_w=False, pretouch=True, dump=None)
for a in sys.argv[2:]:
    k, v = a.split("=")
    OPT[k] = {"1": True, "0": False}.get(v, v)

def f2u(f): return struct.unpack("<I", struct.pack("<f", f))[0]
CSCALE = math.log2(math.e) / 16.0
THRESH = 8.0
KS = 16896
VB = 4 * KS
WQB = 3 * KS
OXB = 65536
NT_KV = " nt" if OPT["nt_kv"] else ""
NT_X = " nt" if OPT["nt_x"] else ""
NT_W = " nt" if OPT["nt_w"] else ""

sX, sK, sV, sWq, sWo, sWs, sDbg, sOut = 20, 24, 28, 32, 36, 40, 44, 48
sB, sH, sRot, sC, sT, sKVm, sWqm, sWom = 52, 53, 54, 55, 56, 57, 58, 59
sWqOff = 60
sTmp, sKo, sVo = 67, 68, 69
sKx, sVx, sM0V = 70, 72, 74
sCg, sTmp2, sSt, sWoW = 76, 77, 78, 79
sU = 80
STAMP0 = 84
def srd(d): return f"s[{d}:{d+3}]"
vK, vV, vK0, vV0 = 1, 2, 3, 4
vD = 5
vMx = 9
vA = 10
vL16 = 14
vT = 15
SB = [16, 40]
NEGM = 64
SPARE = 76
OB = 88
ACC1 = [16, 64]
FR1 = 112
vW = 176
vXo = 180
DUMMY = 184
aQ = 0
aL, aOnes = 108, 120
aFR = 128
aO7 = 192
aX = 88
def vr(b, n=4): return f"v[{b}:{b+n-1}]"
def ar(b, n=4): return f"a[{b}:{b+n-1}]"
def Qf(rt, ds): return ar(aQ + 4 * (ds * 3 + rt))
def Xf(slot, rt): return ar(aX + 4 * (slot * 3 + rt))
def Oacc(dt, rt):
    ks = dt >> 1
    if ks < 7: return vr(OB + (ks * 3 + rt) * 8 + (dt & 1) * 4)
    return ar(aO7 + rt * 8 + (dt & 1) * 4)
def Sreg(buf, rt, T): return SB[buf] + rt * 8 + T * 4
MF = "v_mfma_f32_16x16x32_bf16"

nstamp = [0]
def stamp(P):
    if not OPT["stamps"]: return
    j = nstamp[0]; nstamp[0] += 1
    assert j < 7
    P += [Ins("s_memrealtime s[98:99]"), Ins("s_memtime s[100:101]"), Ins("s_waitcnt lgkmcnt(0)"),
          Ins(f"s_mov_b32 s{STAMP0+2*j}, s98"), Ins(f"s_mov_b32 s{STAMP0+2*j+1}, s100")]

def L(P, s):
    for line in s.strip().split("\n"):
        line = line.strip()
        if line: P.append(Ins(line))

def prologue(P):
    L(P, f"""
s_cmp_ge_u32 s2, 256
s_cbranch_scc1 L_end
s_load_dwordx16 s[4:19], s[0:1], 0
v_lshrrev_b32 v{vT}, 6, v0
v_and_b32 v0, 63, v0
s_lshr_b32 s{sB}, s2, 3
v_readfirstlane_b32 s3, v{vT}
s_and_b32 s{sH}, s2, 7
s_mul_i32 s{sTmp}, s{sB}, 37
s_lshr_b32 s{sTmp}, s{sTmp}, 8
s_mul_i32 s{sTmp}, s{sTmp}, 7
s_sub_u32 s{sRot}, s{sB}, s{sTmp}
v_lshlrev_b32 v{vL16}, 4, v0
""")
    a, b, c = DUMMY, DUMMY + 1, DUMMY + 2
    L(P, f"""
v_lshrrev_b32 v{a}, 1, v0
v_lshrrev_b32 v{b}, 4, v0
v_xor_b32 v{a}, v{a}, v{b}
v_and_b32 v{a}, 3, v{a}
v_lshrrev_b32 v{b}, 1, v{a}
v_lshlrev_b32 v{b}, 2, v{b}
v_and_b32 v{c}, 1, v{a}
v_or_b32 v{b}, v{b}, v{c}
v_and_b32 v{c}, 1, v0
v_lshl_or_b32 v{b}, v{c}, 1, v{b}
v_lshlrev_b32 v{b}, 4, v{b}
v_bfe_u32 v{c}, v0, 3, 2
v_lshl_add_u32 v{b}, v{c}, 13, v{b}
v_lshrrev_b32 v{c}, 5, v0
v_lshl_add_u32 v{vW}, v{c}, 16, v{b}
v_add_u32 v{vW+1}, {4*8192-1024}, v{vW}
v_add_u32 v{vW+2}, {16*8192-2048}, v{vW}
v_add_u32 v{vW+3}, {20*8192-3072}, v{vW}
s_and_b32 s{sU}, s3, 1
s_lshr_b32 s{sU+1}, s3, 1
s_lshl_b32 s{sU+2}, s{sU+1}, 18
s_lshl_b32 s{sU+3}, s{sU}, 9
s_add_u32 s{sU+2}, s{sU+2}, s{sU+3}
s_lshl_b32 s{sWqm}, s3, 12
s_add_u32 s{sWqm}, s{sWqm}, {WQB}
s_mul_i32 s{sTmp}, s{sU+1}, {48*896}
v_and_b32 v{a}, 15, v0
v_mul_u32_u24 v{a}, 896, v{a}
v_lshrrev_b32 v{b}, 4, v0
v_lshl_add_u32 v{a}, v{b}, 4, v{a}
v_add_u32 v{vXo}, s{sTmp}, v{a}
v_add_u32 v{vXo+1}, {16*896}, v{vXo}
v_add_u32 v{vXo+2}, {32*896}, v{vXo}
s_waitcnt lgkmcnt(0)
""")
    stamp(P)
    L(P, f"""
s_lshl_b32 s{sTmp}, s{sH}, 10
s_add_u32 s{sWq}, s10, s{sTmp}
s_addc_u32 s{sWq+1}, s11, 0
s_and_b32 s{sWq+1}, s{sWq+1}, 0xffff
s_mov_b32 s{sWq+2}, {447*8192+640}
s_mov_b32 s{sWq+3}, 0x20000
s_mul_i32 s{sTmp}, s{sB}, 86016
s_add_u32 s{sX}, s4, s{sTmp}
s_addc_u32 s{sX+1}, s5, 0
s_and_b32 s{sX+1}, s{sX+1}, 0xffff
s_mov_b32 s{sX+2}, 86016
s_mov_b32 s{sX+3}, 0x20000
s_mov_b32 s{sTmp2}, s{sRot}
""")
    def wq_dma(s):
        r = [Ins(f"s_add_u32 m0, s{sWqm}, {(s % 4) * 16384}"), Ins("s_nop 0")]
        for ch in range(4):
            r.append(Ins(f"buffer_load_dwordx4 v{vW+ch}, {srd(sWq)}, s{sWqOff + s % 7} offen offset:{ch*1024}{NT_W} lds", tag=f"wq{s}"))
        return r
    for st in range(7):
        L(P, f"""
s_lshl_b32 s{sTmp}, s{sTmp2}, 19
s_add_u32 s{sWqOff+st}, s{sTmp}, s{sU+2}
s_lshl_b32 s{sTmp}, s{sTmp2}, 7
""")
        if st < 3: P += wq_dma(st)
        for kk in range(2):
            if kk: L(P, f"s_add_u32 s{sTmp}, s{sTmp}, 64")
            for rt in range(3):
                P.append(Ins(f"buffer_load_dwordx4 {Xf(2*st+kk, rt)}, v{vXo+rt}, {srd(sX)}, s{sTmp} offen{NT_X}", tag=f"x{st}"))
        if st == 0 and OPT["pretouch"]:
            L(P, f"s_mul_i32 s{sSt}, s{sB}, 14\ns_add_u32 s{sCg}, s{sSt}, 13\ns_add_u32 s{sSt}, s{sSt}, s3")
            for i in range(4):
                L(P, f"s_min_u32 s{sTmp}, s{sSt}, s{sCg}\ns_lshl_b32 s{sTmp}, s{sTmp}, 13\ns_add_u32 s{sSt}, s{sSt}, 4")
                P.append(Ins(f"buffer_load_dwordx4 {vr(DUMMY+4*i)}, v{vL16}, {srd(sWq)}, s{sTmp} offen"))
        L(P, f"""
s_add_u32 s{sTmp2}, s{sTmp2}, 1
s_cmp_eq_u32 s{sTmp2}, 7
s_cselect_b32 s{sTmp2}, 0, s{sTmp2}
""")
    a, b, c = 200, 201, 202
    L(P, f"""
s_lshl_b32 s{sTmp}, s2, 18
s_sub_u32 s{sTmp}, s{sTmp}, 96
s_cselect_b32 s{sTmp2}, -1, 0
s_add_u32 s{sK}, s6, s{sTmp}
s_addc_u32 s{sK+1}, s7, s{sTmp2}
s_and_b32 s{sK+1}, s{sK+1}, 0xffff
s_mov_b32 s{sK+2}, {262144+96}
s_mov_b32 s{sK+3}, 0x20000
s_add_u32 s{sV}, s8, s{sTmp}
s_addc_u32 s{sV+1}, s9, s{sTmp2}
s_and_b32 s{sV+1}, s{sV+1}, 0xffff
s_mov_b32 s{sV+2}, {262144+96}
s_mov_b32 s{sV+3}, 0x20000
s_mul_i32 s{sTmp}, s{sH}, 458752
s_add_u32 s{sWo}, s12, s{sTmp}
s_addc_u32 s{sWo+1}, s13, 0
s_and_b32 s{sWo+1}, s{sWo+1}, 0xffff
s_mov_b32 s{sWo+2}, 458752
s_mov_b32 s{sWo+3}, 0x20000
s_mul_i32 s{sTmp}, s{sB}, 688128
s_add_u32 s{sWs}, s18, s{sTmp}
s_addc_u32 s{sWs+1}, s19, 0
s_and_b32 s{sWs+1}, s{sWs+1}, 0xffff
s_mov_b32 s{sWs+2}, 688128
s_mov_b32 s{sWs+3}, 0x20000
s_mul_i32 s{sTmp}, s{sB}, 86016
s_add_u32 s{sOut}, s14, s{sTmp}
s_addc_u32 s{sOut+1}, s15, 0
s_and_b32 s{sOut+1}, s{sOut+1}, 0xffff
s_mov_b32 s{sOut+2}, 86016
s_mov_b32 s{sOut+3}, 0x20000
s_mov_b32 s{sDbg}, s16
s_and_b32 s{sDbg+1}, s17, 0xffff
s_mov_b32 s{sDbg+2}, 256
s_mov_b32 s{sDbg+3}, 0x20000
s_mov_b32 s{sC}, {hex(f2u(CSCALE))}
s_mov_b32 s{sT}, {hex(f2u(THRESH))}
s_mul_i32 s{sKVm}, s3, 4224
s_lshl_b32 s{sKo}, s3, 12
s_mov_b32 s{sVo}, s{sKo}
s_mov_b32 s{sKx}, 0
s_mov_b32 s{sKx+1}, {KS}
s_mov_b32 s{sVx}, {VB+3*KS}
s_mov_b32 s{sVx+1}, {VB+2*KS}
s_add_u32 s{sM0V}, s{sKVm}, {VB+KS}
s_lshl_b32 s{sWom}, s{sU}, 13
s_lshl_b32 s{sTmp}, s{sU+1}, 12
s_add_u32 s{sWom}, s{sWom}, s{sTmp}
s_mul_i32 s{sWoW}, s{sU}, {256*896}
s_mul_i32 s{sTmp}, s{sU+1}, {32*896}
s_add_u32 s{sWoW}, s{sWoW}, s{sTmp}
v_add_u32 v{vD}, 96, v{vL16}
v_add_u32 v{vD+1}, 64, v{vL16}
v_add_u32 v{vD+2}, 32, v{vL16}
v_mov_b32 v{vD+3}, v{vL16}
v_and_b32 v{a}, 7, v0
v_mul_u32_u24 v{a}, 1056, v{a}
v_bfe_u32 v{b}, v0, 3, 1
v_lshl_add_u32 v{a}, v{b}, 9, v{a}
v_lshrrev_b32 v{b}, 4, v0
v_lshl_add_u32 v{vK0}, v{b}, 4, v{a}
v_mov_b32 v{vK}, v{vK0}
v_bfe_u32 v{a}, v0, 2, 3
v_mul_u32_u24 v{b}, 1056, v{a}
v_lshrrev_b32 v{c}, 5, v0
v_lshl_add_u32 v{b}, v{c}, 9, v{b}
v_and_b32 v{c}, 3, v0
v_lshl_add_u32 v{vV0}, v{c}, 3, v{b}
v_add_u32 v{vV}, {VB+3*KS}, v{vV0}
v_lshlrev_b32 v{b}, 7, v{a}
v_lshl_add_u32 v{b}, v{c}, 3, v{b}
v_lshrrev_b32 v{c}, 5, v0
v_lshl_add_u32 v{b}, v{c}, 11, v{b}
s_lshl_b32 s{sTmp}, s{sU}, 12
s_add_u32 s{sTmp}, s{sTmp}, {WQB}
v_add_u32 v{b}, s{sTmp}, v{b}
v_lshrrev_b32 v{a}, 1, v{a}
""")
    for t in range(4):
        L(P, f"v_xor_b32 v{c}, {t}, v{a}\nv_lshl_add_u32 v{vA+t}, v{c}, 5, v{b}")

def kv_group(isK, m0txt, tag):
    s, o = (sK, sKo) if isK else (sV, sVo)
    r = [[Ins(m0txt)]]
    for k in range(4):
        r.append([Ins(f"buffer_load_dwordx4 v{vD+k}, {srd(s)}, s{o} offen offset:{k*1056}{NT_KV} lds", cost=2, tag=tag)])
    r.append([Ins(f"s_add_u32 s{o}, s{o}, 16384")])
    return r

def q_epilogue(dg):
    r = []
    base = ACC1[dg & 1]
    for e in range(2):
        for rt in range(3):
            A = base + ((2 * e) * 3 + rt) * 4; B = base + ((2 * e + 1) * 3 + rt) * 4
            for k in range(4): r.append(f"v_mul_f32 v{A+k}, s{sC}, v{A+k}")
            for k in range(4): r.append(f"v_mul_f32 v{B+k}, s{sC}, v{B+k}")
            r += [f"v_cvt_pk_bf16_f32 v{A}, v{A}, v{A+1}", f"v_cvt_pk_bf16_f32 v{B}, v{B}, v{B+1}",
                  f"v_cvt_pk_bf16_f32 v{A+1}, v{A+2}, v{A+3}", f"v_cvt_pk_bf16_f32 v{B+1}, v{B+2}, v{B+3}",
                  "s_nop 0",
                  f"v_permlane16_swap_b32 v{A}, v{B}", f"v_permlane16_swap_b32 v{A+1}, v{B+1}"]
            q = aQ + 4 * ((2 * dg + e) * 3 + rt)
            r += [f"v_accvgpr_write_b32 a{q}, v{A}", f"v_accvgpr_write_b32 a{q+1}, v{A+1}",
                  f"v_accvgpr_write_b32 a{q+2}, v{B}", f"v_accvgpr_write_b32 a{q+3}, v{B+1}"]
    return r

def kread(fi, ds, T):
    return Ins(f"ds_read_b128 {ar(aFR + 4*(fi % 16))}, v{vK} offset:{T*8448 + ds*64}", tag=f"f{fi}")
def vread(fi, dt):
    b = aFR + 4 * (fi % 16)
    return [Ins(f"ds_read_b64_tr_b16 {ar(b,2)}, v{vV} offset:{dt*32}", tag=f"f{fi}x"),
            Ins(f"ds_read_b64_tr_b16 {ar(b+2,2)}, v{vV} offset:{8448 + dt*32}", tag=f"f{fi}")]

def phase1_and_qk0(P):
    M = []
    for s in range(28):
        dg, st = divmod(s, 7)
        for f in range(8):
            kk, t = f >> 2, f & 3
            F = 8 * s + f
            for rt in range(3):
                acc = vr(ACC1[dg & 1] + (t * 3 + rt) * 4)
                c = "0" if (st == 0 and kk == 0) else acc
                M.append(Ins(f"{MF} {acc}, {vr(FR1 + 4*(F % 16))}, {Xf(2*st+kk, rt)}, {c}"))
    n1 = len(M)
    for ds in range(8):
        for T in range(2):
            fi = ds * 2 + T
            for rt in range(3):
                acc = vr(Sreg(0, rt, T))
                c = "0" if ds == 0 else acc
                M.append(Ins(f"{MF} {acc}, {ar(aFR + 4*(fi % 16))}, {Qf(rt, ds)}, {c}"))
    sync, reads, dma, epi = [], [], [], []
    kvplan = {2: (True, 0, "K0"), 6: (True, KS, "K1"), 10: (False, VB + 3 * KS, "V0"), 14: (True, 2 * KS, "K2"),
              18: (False, VB + 4 * KS, "V1"), 26: (True, 3 * KS, "K3"), 27: (False, VB, "V2")}
    for s in range(29):
        g0 = max(24 * s - 13, -1)
        if s < 28:
            tg = [f"wq{s}"] + ([f"x{s}"] if s < 7 else [])
            w = W(vm=tg, lg=0 if s > 0 else None)
        else:
            w = W(vm=["V0"], lg=0)
        sync.append(Item([w, Ins("s_barrier")], g0, g0))
        if s < 28:
            for f in range(8):
                kk, t = f >> 2, f & 3
                F = 8 * s + f
                b = FR1 + 4 * (F % 16)
                off = (s % 4) * 16384 + kk * 8192
                e = max(24 * s - 12, -1)
                d = (24 * s - 8 if f < 4 else 24 * s + 4)
                if s == 0: e = -1; d = -1 if f < 4 else 4
                reads.append(Item(Ins(f"ds_read_b64_tr_b16 {vr(b,2)}, v{vA+t} offset:{off}", tag=f"w{F}x"), e, d))
                reads.append(Item(Ins(f"ds_read_b64_tr_b16 {vr(b+2,2)}, v{vA+t} offset:{off+1024}", tag=f"w{F}"), e, d))
            sync.append(Item(W(lg=f"w{8*s+3}"), 24 * s - 1, 24 * s - 1))
        else:
            for fi in range(16):
                ds, T = fi >> 1, fi & 1
                first = n1 + 3 * fi
                reads.append(Item(kread(fi, ds, T), max(first - 15, g0 + 1), first - (first - n1) % 6 - 6))
            for i in range(8):
                sync.append(Item(W(lg=f"f{2*i+1}"), n1 + 6 * i - 1, n1 + 6 * i - 1))
        e = max(24 * s - 8, -1); d = 24 * s + 9
        s3 = s + 3
        if s3 < 28:
            if s3 % 7 == 0:
                dma.append(Item([Ins(f"s_add_u32 s{sWq}, s{sWq}, 128"), Ins(f"s_addc_u32 s{sWq+1}, s{sWq+1}, 0")], e, d))
            dma.append(Item(Ins(f"s_add_u32 m0, s{sWqm}, {(s3 % 4) * 16384}"), e, d))
            for ch in range(4):
                dma.append(Item(Ins(f"buffer_load_dwordx4 v{vW+ch}, {srd(sWq)}, s{sWqOff + s3 % 7} offen offset:{ch*1024}{NT_W} lds",
                                    cost=2, tag=f"wq{s3}"), e, d))
        if s in kvplan:
            isK, off, tag = kvplan[s]
            for x in kv_group(isK, f"s_add_u32 m0, s{sKVm}, {off}", tag): dma.append(Item(x, e, d + 1))
    for dg in range(4):
        ins = q_epilogue(dg)
        e0 = 168 * (dg + 1) + 6
        if dg < 3:
            for i, x in enumerate(ins):
                e = e0 + (i * 150) // len(ins)
                epi.append(Item(Ins(x), e, e + 6))
        else:
            h = len(ins) // 2
            for i, x in enumerate(ins):
                epi.append(Item(Ins(x), e0, n1 + (33 if i < h else 39)))
    misc = [Item(Ins(f"v_mov_b32 v{vT}, 0x3f803f80"), n1 + 10, n1 + 44)]
    for k in range(4): misc.append(Item(Ins(f"v_accvgpr_write_b32 a{aOnes+k}, v{vT}"), n1 + 10, n1 + 45))
    misc.append(Item(Ins(f"v_add_u32 v{vK}, s{sKx+1}, v{vK0}"), n1 + 43, n1 + 45))
    P += schedule(M, sync, [tighten(reads), tighten(dma), tighten(epi), tighten(misc)], name="p1", verbose=True)

def crossmax(r, t):
    return [f"v_mov_b32 v{t}, v{r}", "s_nop 1", f"v_permlane32_swap_b32 v{r}, v{t}", f"v_max_f32 v{r}, v{r}, v{t}",
            f"v_mov_b32 v{t}, v{r}", "s_nop 1", f"v_permlane16_swap_b32 v{r}, v{t}", f"v_max_f32 v{r}, v{r}, v{t}"]

def init_path(P):
    for fi in range(4): P.append(kread(16 + fi, fi >> 1, fi & 1))
    L(P, "s_nop 3")
    X = SPARE
    for rt in range(3):
        s = Sreg(0, rt, 0)
        L(P, f"v_max3_f32 v{X+rt}, v{s}, v{s+1}, v{s+2}\nv_max3_f32 v{X+rt}, v{X+rt}, v{s+3}, v{s+4}\n"
             f"v_max3_f32 v{X+rt}, v{X+rt}, v{s+5}, v{s+6}\nv_max_f32 v{X+rt}, v{X+rt}, v{s+7}")
    for rt in range(3): L(P, f"v_mov_b32 v{X+3+rt}, v{X+rt}")
    for rt in range(3): L(P, f"v_permlane32_swap_b32 v{X+rt}, v{X+3+rt}")
    for rt in range(3): L(P, f"v_max_f32 v{X+rt}, v{X+rt}, v{X+3+rt}")
    for rt in range(3): L(P, f"v_mov_b32 v{X+3+rt}, v{X+rt}")
    for rt in range(3): L(P, f"v_permlane16_swap_b32 v{X+rt}, v{X+3+rt}")
    for rt in range(3): L(P, f"v_max_f32 v{X+rt}, v{X+rt}, v{X+3+rt}")
    for rt in range(3):
        for k in range(4): L(P, f"v_sub_f32 v{NEGM+4*rt+k}, 0, v{X+rt}")
    for rt in range(3):
        s = Sreg(0, rt, 0)
        for k in range(8): L(P, f"v_sub_f32 v{s+k}, v{s+k}, v{X+rt}")
    L(P, "s_barrier")

def rare_path(R, site, buf):
    L(R, f"L_rare_{site}:\ns_nop 7\ns_nop 1")
    X = SPARE
    for rt in range(3):
        s = Sreg(buf, rt, 0)
        L(R, f"v_max3_f32 v{X}, v{s}, v{s+1}, v{s+2}\nv_max3_f32 v{X}, v{X}, v{s+3}, v{s+4}\n"
             f"v_max3_f32 v{X}, v{X}, v{s+5}, v{s+6}\nv_max3_f32 v{X}, v{X}, v{s+7}, 0")
        L(R, "\n".join(crossmax(X, X + 1)))
        for k in range(8): L(R, f"v_sub_f32 v{s+k}, v{s+k}, v{X}")
        for k in range(4): L(R, f"v_sub_f32 v{NEGM+4*rt+k}, v{NEGM+4*rt+k}, v{X}")
        L(R, f"v_sub_f32 v{X+1}, 0, v{X}\nv_exp_f32 v{X+1}, v{X+1}\ns_nop 0")
        for ks in range(7):
            for k in range(8): L(R, f"v_mul_f32 v{OB+(ks*3+rt)*8+k}, v{OB+(ks*3+rt)*8+k}, v{X+1}")
        for a in [aO7 + rt * 8 + k for k in range(8)] + [aL + 4 * rt + k for k in range(4)]:
            L(R, f"v_accvgpr_read_b32 v{X+2}, a{a}\nv_mul_f32 v{X+2}, v{X+2}, v{X+1}\nv_accvgpr_write_b32 a{a}, v{X+2}")
    L(R, f"s_nop 1\ns_branch L_ret_{site}")

def iteration(P, j):
    p = j & 1
    last = (j == 15)
    site = "i0" if j == 0 else ("A" if j & 1 else "B")
    FK = 16 + 32 * j
    FV = FK + 16
    FN = FV + 16
    M = []
    if not last:
        for ds in range(8):
            for T in range(2):
                for rt in range(3):
                    acc = vr(Sreg(1 - p, rt, T))
                    c = vr(NEGM + 4 * rt) if ds == 0 else acc
                    M.append(Ins(f"{MF} {acc}, {ar(aFR + 4*((FK + 2*ds + T) % 16))}, {Qf(rt, ds)}, {c}"))
    nq = len(M)
    for rt in range(3):
        c = "0" if j == 0 else ar(aL + 4 * rt)
        M.append(Ins(f"{MF} {ar(aL+4*rt)}, {ar(aOnes)}, {vr(Sreg(p, rt, 0))}, {c}"))
    n0 = len(M)
    for dt in range(16):
        for rt in range(3):
            c = "0" if j == 0 else Oacc(dt, rt)
            M.append(Ins(f"{MF} {Oacc(dt, rt)}, {ar(aFR + 4*((FV + dt) % 16))}, {vr(Sreg(p, rt, 0))}, {c}"))
    n = len(M)
    sync, reads, soft, dma, chk = [], [], [], [], []
    gbar = n - 11
    for rt in range(3):
        s = Sreg(p, rt, 0)
        dl = nq - 3 + rt if not last else -1
        seq = []
        for k in range(8): seq.append(Ins(f"v_exp_f32 v{s+k}, v{s+k}", cost=2))
        cv = [Ins(f"v_cvt_pk_bf16_f32 v{s+k}, v{s+2*k}, v{s+2*k+1}") for k in range(4)]
        order = seq[0:4] + [cv[0]] + seq[4:6] + [cv[1]] + seq[6:8] + [cv[2], cv[3]]
        for x in order: soft.append(Item(x, -1 if last else 0, dl))
    if last: soft.append(Item(Ins("s_nop 1"), -1, -1))
    if not last:
        for fi in range(4, 16):
            first = 3 * fi
            reads.append(Item(kread(FK + fi, fi >> 1, fi & 1), max(first - 15, 0), first - first % 6 - 6))
        for i in range(8):
            sync.append(Item(W(lg=f"f{FK+2*i+1}"), 6 * i - 1, 6 * i - 1))
    for dt in range(16):
        first = n0 + 3 * dt
        wpos = first - (3 * dt) % 6 - 1
        for x in vread(FV + dt, dt): reads.append(Item(x, max(first - 16, -1), max(wpos - 5, -1)))
    for i in range(8):
        sync.append(Item(W(lg=f"f{FV+2*i+1}"), n0 + 6 * i - 1, n0 + 6 * i - 1))
    if not last:
        tgt = {0: "V1", 1: "V2"}.get(j, f"G{j-2}")
        sync.append(Item([W(vm=tgt), Ins("s_barrier")], gbar, gbar))
        sync.sort(key=lambda it: it.e)
        for fi in range(4):
            reads.append(Item(kread(FN + fi, fi >> 1, fi & 1), gbar + 1, n - 6))
        e = nq + 1; d = gbar - 1
        for x in kv_group(True, f"s_add_u32 m0, s{sKx+p}, s{sKVm}", f"G{j}"): dma.append(Item(x, e, d))
        for x in kv_group(False, f"s_mov_b32 m0, s{sM0V}", f"G{j}"): dma.append(Item(x, e, d))
        dma.append(Item(Ins(f"s_add_u32 s{sTmp}, s{sKx+1-p}, {KS}"), e, d))
        dma.append(Item([Ins(f"s_cmp_eq_u32 s{sTmp}, {4*KS}"), Ins(f"s_cselect_b32 s{sKx+p}, 0, s{sTmp}")], e, d))
        dma.append(Item(Ins(f"v_add_u32 v{vK}, s{sKx+p}, v{vK0}"), e, d))
        dma.append(Item(Ins(f"s_add_u32 s{sM0V}, s{sVx+1-p}, s{sKVm}"), e, n - 2))
        dma.append(Item(Ins(f"s_add_u32 s{sTmp}, s{sVx+p}, {KS}"), e, n - 2))
        dma.append(Item([Ins(f"s_cmp_eq_u32 s{sTmp}, {VB+5*KS}"), Ins(f"s_cselect_b32 s{sVx+1-p}, {VB}, s{sTmp}")], e, n - 2))
        vlast = n0 + 3 * 14 - 1 - 5
        dma.append(Item(Ins(f"v_add_u32 v{vV}, s{sVx+1-p}, v{vV0}"), vlast + 1, n - 1))
        s = SB[1 - p]
        e = nq + 6
        chk.append(Item(Ins(f"v_max3_f32 v{vMx}, v{s}, v{s+1}, v{s+2}"), e, n - 3))
        for k in range(3, 23, 2): chk.append(Item(Ins(f"v_max3_f32 v{vMx}, v{vMx}, v{s+k}, v{s+k+1}"), e, n - 3))
        chk.append(Item(Ins(f"v_max_f32 v{vMx}, v{vMx}, v{s+23}"), e, n - 3))
        chk.append(Item(Ins(f"v_cmp_lt_f32 vcc, s{sT}, v{vMx}"), e, n - 2))
    else:
        e = 0
        a, b, c = SPARE, SPARE + 1, SPARE + 2
        pre = f"""
v_lshrrev_b32 v{a}, 1, v0
v_lshrrev_b32 v{b}, 4, v0
v_xor_b32 v{a}, v{a}, v{b}
v_and_b32 v{a}, 3, v{a}
v_and_b32 v{c}, 1, v0
v_lshl_or_b32 v{a}, v{a}, 1, v{c}
v_lshrrev_b32 v{b}, 3, v0
v_mul_u32_u24 v{b}, 896, v{b}
v_lshl_add_u32 v{vD}, v{a}, 4, v{b}
v_add_u32 v{vD+1}, {8*896-1024}, v{vD}
v_add_u32 v{vD+2}, {16*896-2048}, v{vD}
v_add_u32 v{vD+3}, {24*896-3072}, v{vD}
s_lshl_b32 s{sCg}, s{sRot}, 7
s_add_u32 s{sCg}, s{sCg}, s{sWoW}
"""
        for x in pre.strip().split("\n"): dma.append(Item(Ins(x), e, 12))
        for sg in range(3):
            for x in wo_dma(sg): dma.append(Item(x, e, n - 2))
        rd = f"""
v_bfe_u32 v{a}, v0, 2, 3
v_lshlrev_b32 v{b}, 7, v{a}
v_and_b32 v{c}, 3, v0
v_lshl_add_u32 v{b}, v{c}, 3, v{b}
v_lshrrev_b32 v{c}, 5, v0
v_lshl_add_u32 v{b}, v{c}, 10, v{b}
v_lshrrev_b32 v{a}, 1, v{a}
s_lshl_b32 s{sTmp}, s{sU}, 1
v_xor_b32 v{a}, s{sTmp}, v{a}
v_xor_b32 v{c}, 1, v{a}
v_lshl_add_u32 v{a}, v{a}, 5, v{b}
v_lshl_add_u32 v{c}, v{c}, 5, v{b}
s_lshl_b32 s{sTmp}, s{sU}, 13
v_add_u32 v{vA}, s{sTmp}, v{a}
v_add_u32 v{vA+1}, s{sTmp}, v{c}
s_xor_b32 s{sTmp}, s{sTmp}, 8192
v_add_u32 v{vA+2}, s{sTmp}, v{a}
v_add_u32 v{vA+3}, s{sTmp}, v{c}
"""
        for x in rd.strip().split("\n"): dma.append(Item(Ins(x), e, n - 1))
        for rt in range(3):
            chk.append(Item(Ins(f"v_accvgpr_read_b32 v{SPARE+4+2*rt}, a{aL+4*rt}"), 12, n - 1))
            chk.append(Item(Ins(f"v_rcp_f32 v{SPARE+4+2*rt}, v{SPARE+4+2*rt}", cost=2), 12, n - 1))
    if last:
        P += [W(vm=0, lg=0), Ins("s_barrier")]
    P += schedule(M, sync, [tighten(reads), tighten(soft), tighten(dma), tighten(chk)], name=f"it{j}", verbose=(j in (0, 1, 2, 15)))
    if not last:
        L(P, f"s_cbranch_vccnz L_rare_{site}\nL_ret_{site}:")

def wo_dma(sg):
    i = sg & 3
    r = []
    if i == 0 and sg > 0:
        r.append([Ins(f"s_add_u32 s{sCg}, s{sCg}, 128")])
        r.append([Ins(f"s_sub_u32 s{sTmp2}, s{sCg}, s{sWoW}")])
        r.append([Ins(f"s_cmp_eq_u32 s{sTmp2}, 896"), Ins(f"s_cselect_b32 s{sCg}, s{sWoW}, s{sCg}")])
    r.append([Ins(f"s_add_u32 s{sTmp2}, s{sCg}, {64*896*i}")])
    r.append([Ins(f"s_add_u32 m0, s{sWom}, {i*16384}")])
    for ch in range(4):
        r.append([Ins(f"buffer_load_dwordx4 v{vD+ch}, {srd(sWo)}, s{sTmp2} offen offset:{ch*1024}{NT_W} lds", cost=2, tag=f"wo{sg}")])
    return r

def Ofrag(part, ks, rt):
    if ks < 7: return vr(OB + (ks * 3 + rt) * 8 + 4 * part)
    return vr(NEGM + 4 * rt) if part == 0 else ar(aO7 + rt * 8)

def transition(P):
    vx = vK
    vy = vV
    L(P, f"""
s_mul_i32 s{sTmp}, s3, 24576
s_add_u32 s{sTmp}, s{sTmp}, {OXB}
v_add_u32 v{vx}, s{sTmp}, v{vL16}
s_xor_b32 s{sTmp}, s3, 1
s_mul_i32 s{sTmp}, s{sTmp}, 24576
s_add_u32 s{sTmp}, s{sTmp}, {OXB}
v_add_u32 v{vy}, s{sTmp}, v{vL16}
s_barrier
s_nop 1
""")
    for ks in range(8):
        for rt in range(3):
            rl = SPARE + 4 + 2 * rt
            if ks < 7:
                b = OB + (ks * 3 + rt) * 8; dst = b
            else:
                b = SB[0] + rt * 8; dst = NEGM + 4 * rt
                for k in range(8): L(P, f"v_accvgpr_read_b32 v{b+k}, a{aO7+rt*8+k}")
            for k in range(4):
                L(P, f"v_pk_mul_f32 {vr(b+2*k,2)}, {vr(b+2*k,2)}, {vr(rl,2)} op_sel_hi:[1,0]")
            for k in range(4):
                L(P, f"v_cvt_pk_bf16_f32 v{dst+k}, v{b+2*k}, v{b+2*k+1}")
            L(P, f"ds_write_b128 v{vx}, {vr(dst)} offset:{(ks*3+rt)*1024}")
    L(P, "s_waitcnt lgkmcnt(0)\ns_barrier")
    for ks in range(8):
        for rt in range(3):
            P.append(Ins(f"ds_read_b128 {Ofrag(1, ks, rt)}, v{vy} offset:{(ks*3+rt)*1024}", tag=f"ox{ks}"))
        if ks == 3: P.append(W(lg=12))
    L(P, f"""
s_mul_i32 s{sSt}, s3, {3*8192}
s_lshl_b32 s{sTmp}, s{sH}, 10
s_add_u32 s{sSt}, s{sSt}, s{sTmp}
""")

def phase3(P):
    M = []
    F0 = 16 + 32 * 16
    for sg in range(28):
        si, i = sg >> 2, sg & 3
        for f in range(8):
            part, kk, tt = f >> 2, (f >> 1) & 1, f & 1
            for rt in range(3):
                acc = vr(SB[si & 1] + rt * 8 + tt * 4)
                c = "0" if (i == 0 and part == 0 and kk == 0) else acc
                M.append(Ins(f"{MF} {acc}, {ar(aFR + 4*((F0 + 8*sg + f) % 16))}, {Ofrag(part, 2*i+kk, rt)}, {c}"))
    n = len(M)
    sync, reads, dma, epi = [], [], [], []
    for s in range(28):
        g0 = max(24 * s - 13, -1)
        sync.append(Item([W(vm=f"wo{s}", lg=0), Ins("s_barrier")], g0, g0))
        for f in range(8):
            part, kk, tt = f >> 2, (f >> 1) & 1, f & 1
            F = F0 + 8 * s + f
            b = aFR + 4 * (F % 16)
            off = (s % 4) * 16384 + kk * 4096
            e = max(24 * s - 12, -1)
            d = (24 * s - 8 if f < 4 else 24 * s + 4)
            if s == 0: e = -1; d = -1 if f < 4 else 4
            reads.append(Item(Ins(f"ds_read_b64_tr_b16 {ar(b,2)}, v{vA+2*part+tt} offset:{off}", tag=f"w{F}x"), e, d))
            reads.append(Item(Ins(f"ds_read_b64_tr_b16 {ar(b+2,2)}, v{vA+2*part+tt} offset:{off+2048}", tag=f"w{F}"), e, d))
        sync.append(Item(W(lg=f"w{F0+8*s+3}"), 24 * s - 1, 24 * s - 1))
        e = max(24 * s - 8, -1); d = 24 * s + 9
        if s + 3 < 28:
            for x in wo_dma(s + 3): dma.append(Item(x, e, d))
    sync.append(Item(W(lg=0), 24 * 28 - 13, 24 * 28 - 13))
    for si in range(7):
        e0 = 96 * (si + 1) + 6
        for rt in range(3):
            b = SB[si & 1] + rt * 8
            for k in range(4):
                epi.append(Item(Ins(f"v_cvt_pk_bf16_f32 v{b+k}, v{b+2*k}, v{b+2*k+1}"), e0, e0 + 60))
            epi.append(Item(Ins(f"buffer_store_dwordx4 {vr(b)}, v{vL16}, {srd(sWs)}, s{sSt} offen sc1", cost=2, tag="st"), e0, e0 + 60))
            epi.append(Item(Ins(f"s_add_u32 s{sSt}, s{sSt}, {8192 if rt < 2 else 10*8192}"), e0, e0 + 60))
        if si == 6: epi.insert(len(epi) - 18, Item(Ins("s_nop 7"), e0, e0 + 60))
    P += schedule(M, sync, [tighten(reads), tighten(dma), tighten(epi)], name="p3", verbose=True)

def reduce_units(P, nu):
    a = 10
    LB = 64
    for k in range(nu):
        L(P, f"s_add_u32 s{sTmp}, s{sU}, {32*k}\ns_lshl_b32 s{sTmp}, s{sTmp}, 13")
        for src in range(8):
            if src == 4: L(P, f"s_add_u32 s{sTmp}, s{sTmp}, 4096")
            P.append(Ins(f"buffer_load_dwordx4 {vr(LB + (k*8+src)*4)}, v{vL16}, {srd(sWs)}, s{sTmp} offen offset:{(src&3)*1024} sc1", tag=f"u{nu}{k}s{src}"))
    L(P, f"""
v_and_b32 v{a}, 15, v0
v_mul_u32_u24 v{a}, 896, v{a}
v_bfe_u32 v{a+1}, v0, 4, 1
v_lshl_add_u32 v{a}, v{a+1}, 5, v{a}
v_lshrrev_b32 v{a+1}, 5, v0
v_lshl_add_u32 v{a}, v{a+1}, 4, v{a}
s_mov_b32 s{sU+3}, 0xffff0000
""")
    for k in range(nu):
        L(P, f"""
s_add_u32 s{sTmp}, s{sU}, {32*k}
s_mul_i32 s{sU+1}, s{sTmp}, 43
s_lshr_b32 s{sU+1}, s{sU+1}, 9
s_mul_i32 s{sU+2}, s{sU+1}, 12
s_sub_u32 s{sTmp}, s{sTmp}, s{sU+2}
s_add_u32 s{sU+1}, s{sU+1}, s{sRot}
s_sub_u32 s{sU+2}, s{sU+1}, 7
s_cselect_b32 s{sU+1}, s{sU+1}, s{sU+2}
s_lshl_b32 s{sU+1}, s{sU+1}, 7
s_mul_i32 s{sU+2}, s{sTmp}, 11
s_lshr_b32 s{sU+2}, s{sU+2}, 5
s_mul_i32 s{sTmp2}, s{sU+2}, 3
s_sub_u32 s{sTmp}, s{sTmp}, s{sTmp2}
s_mul_i32 s{sTmp}, s{sTmp}, {16*896}
s_add_u32 s{sU+1}, s{sU+1}, s{sTmp}
s_and_b32 s{sTmp}, s{sU+2}, 1
s_lshl_b32 s{sTmp}, s{sTmp}, 6
s_add_u32 s{sU+1}, s{sU+1}, s{sTmp}
s_lshr_b32 s{sTmp}, s{sU+2}, 1
s_mul_i32 s{sTmp}, s{sTmp}, {48*896}
s_add_u32 s{sU+1}, s{sU+1}, s{sTmp}
""")
        A = 16
        for src in range(8):
            P.append(W(vm=f"u{nu}{k}s{src}"))
            b = LB + (k * 8 + src) * 4
            for r in range(4):
                if src == 0:
                    L(P, f"v_lshlrev_b32 v{A+2*r}, 16, v{b+r}\nv_and_b32 v{A+2*r+1}, s{sU+3}, v{b+r}")
                else:
                    L(P, f"v_lshlrev_b32 v{A+8}, 16, v{b+r}\nv_and_b32 v{A+9}, s{sU+3}, v{b+r}\n"
                         f"v_pk_add_f32 {vr(A+2*r,2)}, {vr(A+2*r,2)}, {vr(A+8,2)}")
        D = 32 + 4 * k
        for r in range(4): L(P, f"v_cvt_pk_bf16_f32 v{D+r}, v{A+2*r}, v{A+2*r+1}")
        L(P, f"s_nop 1\nv_permlane16_swap_b32 v{D}, v{D+2}\nv_permlane16_swap_b32 v{D+1}, v{D+3}")
        L(P, f"buffer_store_dwordx4 {vr(D)}, v{a}, {srd(sOut)}, s{sU+1} offen")

def final(P):
    a = 10
    L(P, f"""
s_waitcnt vmcnt(0)
s_barrier
s_cmp_lg_u32 s3, 0
s_cbranch_scc1 L_nopoll
s_lshl_b32 s{sTmp}, s{sB}, 3
v_mov_b32 v{a}, s{sTmp}
v_mov_b32 v{a+1}, 1
s_mov_b64 exec, 1
buffer_atomic_add v{a+1}, v{a}, {srd(sDbg)}, 0 offen sc1
L_poll:
buffer_load_dword v{a+1}, v{a}, {srd(sDbg)}, 0 offen sc1
s_waitcnt vmcnt(0)
v_readfirstlane_b32 s{sTmp}, v{a+1}
s_nop 1
s_cmp_ge_u32 s{sTmp}, 8
s_cbranch_scc1 L_polled
s_sleep 2
s_branch L_poll
L_polled:
s_mov_b64 exec, -1
L_nopoll:
s_barrier
""")
    stamp(P)
    L(P, f"s_lshl_b32 s{sU}, s{sH}, 2\ns_add_u32 s{sU}, s{sU}, s3\ns_cmp_ge_u32 s{sU}, 20\ns_cbranch_scc1 L_two")
    reduce_units(P, 3)
    L(P, "s_branch L_fin\nL_two:")
    reduce_units(P, 2)
    L(P, "L_fin:")
    if OPT["stamps"]:
        stamp(P)
        ns = nstamp[0]
        L(P, f"""
s_waitcnt vmcnt(0)
s_cmp_lg_u32 s3, 0
s_cbranch_scc1 L_end
s_mov_b32 s{sWs}, s18
s_and_b32 s{sWs+1}, s19, 0xffff
s_mov_b32 s{sWs+2}, 0x10000000
s_mul_i32 s{sTmp}, s2, {ns*16}
s_add_u32 s{sTmp}, s{sTmp}, 0x8000000
v_mov_b32 v{a}, s{sTmp}
s_mov_b64 exec, 1
""")
        L(P, "v_mov_b32 v17, 0\nv_mov_b32 v19, 0")
        for j in range(ns):
            L(P, f"v_mov_b32 v16, s{STAMP0+2*j}\nv_mov_b32 v18, s{STAMP0+2*j+1}\n"
                 f"buffer_store_dwordx4 v[16:19], v{a}, {srd(sWs)}, 0 offen offset:{16*j}\ns_nop 1")

def main():
    P = []
    prologue(P)
    phase1_and_qk0(P)
    stamp(P)
    init_path(P)
    marks = []
    for j in range(16):
        marks.append(len(P))
        iteration(P, j)
        if j & 1 == 0 and 2 <= j <= 14:
            L(P, f"s_cmp_lt_u32 s{sKo}, {19*16384}\ns_cbranch_scc1 L_loop")
    marks.append(len(P))
    stamp(P)
    transition(P)
    stamp(P)
    phase3(P)
    stamp(P)
    nmain = len(P)
    final(P)
    resolve_waits(P)
    errs = check(P[:nmain], "main") + check(P[nmain:], "final")
    body = [i.txt for i in P[marks[1]:marks[3]]]
    for j in range(3, 15, 2):
        assert [i.txt for i in P[marks[j]:marks[j+2]]] == body, f"iteration pair {j} differs"
    R = []
    rare_path(R, "i0", 1); rare_path(R, "A", 0); rare_path(R, "B", 1)
    errs += check(R, "rare")
    for e in errs[:40]: print("HAZARD", e, file=sys.stderr)
    out = P[:marks[1]] + [Ins(".p2align 6"), Ins("L_loop:")] + P[marks[1]:marks[3]] + P[marks[15]:]
    txt = f"""; fused GQA block: Q projection, attention, output projection, cross-workgroup reduce
; @launch grid=(256,1,1) block=(256,1,1) lds=163840
.amdgcn_target "amdgcn-amd-amdhsa--gfx950"
.text
.globl {KN}
.p2align 8
.type {KN},@function
{KN}:
"""
    txt += "\n".join(i.txt for i in out)
    txt += "\nL_end:\ns_endpgm\n"
    txt += "\n".join(i.txt for i in R)
    txt += f"""
s_endpgm
.section .rodata,"a"
.p2align 6
.amdhsa_kernel {KN}
  .amdhsa_next_free_vgpr 512
  .amdhsa_next_free_sgpr 102
  .amdhsa_accum_offset 256
  .amdhsa_group_segment_fixed_size 0
  .amdhsa_kernarg_size 64
  .amdhsa_user_sgpr_count 2
  .amdhsa_user_sgpr_kernarg_segment_ptr 1
  .amdhsa_system_sgpr_workgroup_id_x 1
  .amdhsa_float_denorm_mode_32 3
.end_amdhsa_kernel
"""
    open(sys.argv[1], "w").write(txt)
    print("instructions:", len(out), "stamps:", nstamp[0], file=sys.stderr)

main()
```

```python
import re, sys

class Ins:
    def __init__(self, txt, cost=1, tag=None, lg=None, vm=None):
        self.txt = txt; self.cost = cost; self.tag = tag
        self.lg = lg; self.vm = vm
        self.kind = classify(txt)
    def __repr__(self): return self.txt

TRANS = ("v_exp_f32", "v_rcp_f32", "v_log_f32", "v_rsq_f32", "v_sqrt_f32")
def classify(t):
    m = t.split()[0] if t.strip() else ""
    if m.endswith(":"): return "label"
    if m.startswith(";") or m.startswith("."): return "raw"
    if m.startswith("v_mfma"): return "mfma"
    if m in TRANS: return "trans"
    if m.startswith("v_"): return "valu"
    if m.startswith("ds_"): return "ds"
    if m.startswith("buffer_") or m.startswith("global_"): return "vmem"
    if m == "s_waitcnt" or m == "WAIT": return "wait"
    if m == "s_barrier": return "bar"
    if m in ("s_load_dwordx16", "s_load_dwordx2", "s_load_dwordx4", "s_memtime", "s_memrealtime", "s_load_dword", "s_load_dwordx8"): return "smem"
    if m.startswith("s_cbranch") or m == "s_branch": return "br"
    if m.startswith("s_"): return "salu"
    raise ValueError("unknown instr " + t)

def W(lg=None, vm=None):
    return Ins("WAIT", lg=lg, vm=vm)

class Item:
    def __init__(self, ins, e, d, cost=None, deps=(), lag=1):
        self.deps = list(deps); self.at = None; self.lag = lag
        if not isinstance(ins, list): ins = [ins]
        self.ins = [i if isinstance(i, Ins) else Ins(i) for i in ins]
        self.e = e; self.d = d
        self.cost = cost if cost is not None else sum(i.cost for i in self.ins)

def iclass(it):
    ks = {i.kind for i in it.ins}
    if ks <= {"salu", "wait", "bar", "smem"}: return "s"
    if ks == {"ds"}: return "d"
    if ks == {"vmem"}: return "v"
    assert ks <= {"valu", "trans"}, it.ins
    return "a"

def schedule(mfmas, sync, streams, name="", verbose=False):
    n = len(mfmas)
    out = []
    heads = [0] * len(streams)
    over = 0
    pre = {}
    for it in sync:
        assert -1 <= it.e < n, (name, it.e, n)
        pre.setdefault(it.e, []).append(it)
    overs = []
    for g in range(-1, n):
        if g >= 0: out.append(mfmas[g])
        if g == -1:
            fx = pre.get(g, [])
            for it in fx:
                if any(i.kind == "bar" for i in it.ins): out.extend(it.ins); over += it.cost
            while True:
                best = None
                for si, st in enumerate(streams):
                    if heads[si] < len(st) and st[heads[si]].d <= g:
                        best = si; break
                if best is None: break
                it = streams[best][heads[best]]; heads[best] += 1; it.at = g
                out.extend(it.ins); over += it.cost
            for it in fx:
                if not any(i.kind == "bar" for i in it.ins): out.extend(it.ins); over += it.cost
            overs.append((g, over))
            continue
        lead, mem, val, trail = [], [], [], []
        room = 2
        for it in pre.get(g, []):
            for i in it.ins:
                if lead: room -= 1
                lead.append(i)
        pos = {}
        while True:
            best = None
            for si, st in enumerate(streams):
                if heads[si] >= len(st): continue
                it = st[heads[si]]
                if it.e > g: continue
                if any(x.at is None or (x.at + it.lag > g and it.d > g) for x in it.deps): continue
                c = iclass(it); p0 = pos.get(si, -1)
                forced = it.d <= g
                if c == "s":
                    hasv = any(i.kind == "vmem" for i in mem)
                    if not lead and p0 <= 0 and not hasv: where, cost = 0, it.cost - 1
                    elif lead and not mem and not val and not trail: where, cost = 0, it.cost
                    else: where, cost = 3, it.cost
                elif c == "d":
                    where, cost = 1, 1
                    if mem or p0 > 1 or trail: cost = 3
                elif c == "v":
                    where, cost = 1, 2
                    if mem or p0 > 1 or val or trail or any(i.kind == "salu" for i in lead): cost = 4
                else:
                    where, cost = 2, it.cost
                    if p0 > 2: where = 3
                if cost <= room or forced:
                    cp = {"d": 0, "v": 0, "s": 1, "a": 2}[c]
                    key = (0, cp, it.d, si) if not forced else (-1, cp, it.d, si)
                    if best is None or key < best[0]: best = (key, si, where, cost)
            if best is None: break
            _, si, where, cost = best
            it = streams[si][heads[si]]; heads[si] += 1; it.at = g
            if pos.get(si, -1) > where: where = pos[si]
            pos[si] = where
            (lead, mem, val, trail)[where].extend(it.ins)
            room -= cost
        out.extend(lead + mem + val + trail)
        if room < 0: over += -room; overs.append((g, -room))
    left = 0
    for si, st in enumerate(streams):
        while heads[si] < len(st):
            out.extend(st[heads[si]].ins); left += st[heads[si]].cost; heads[si] += 1
    fixed = []
    for i in out:
        if fixed and i.kind == "vmem" and " lds" in i.txt and fixed[-1].kind == "salu" and " m0," in fixed[-1].txt: fixed.append(Ins("s_nop 0"))
        fixed.append(i)
    out = fixed
    if verbose: print(f"; sched {name}: mfma {n} overflow {over} leftover {left} at {overs[:24]}", file=sys.stderr)
    return out

def tighten(stream):
    d = 10**9
    for it in reversed(stream):
        d = min(d, it.d); it.d = d
    return stream

def resolve_waits(prog):
    for i, ins in enumerate(prog):
        if ins.txt != "WAIT": continue
        parts = []
        for which, kinds, mx in (("vm", ("vmem",), 63), ("lg", ("ds",), 15)):
            tgt = getattr(ins, which)
            if tgt is None: continue
            if isinstance(tgt, int): n = tgt
            else:
                tags = tgt if isinstance(tgt, (list, tuple)) else [tgt]
                n = None
                cnt = 0
                for k in range(i - 1, -1, -1):
                    p = prog[k]
                    if p.kind in kinds:
                        if p.tag in tags: n = cnt; break
                        cnt += 1
                    if which == "lg" and p.kind == "smem": raise ValueError("smem inside counted lgkm window")
                if n is None: raise ValueError(f"wait target {tgt} not found")
                n = min(n, mx)
            parts.append(("vmcnt(%d)" if which == "vm" else "lgkmcnt(%d)") % n)
        ins.txt = "s_waitcnt " + " ".join(parts)

REG = re.compile(r"\b([vas])\[(\d+):(\d+)\]|\b([vas])(\d+)\b|\b(vcc|m0|exec|scc)\b")
def regs_of(op):
    r = set()
    for m in REG.finditer(op):
        if m.group(1): r |= {(m.group(1), k) for k in range(int(m.group(2)), int(m.group(3)) + 1)}
        elif m.group(4): r.add((m.group(4), int(m.group(5))))
        else: r.add((m.group(6), 0))
    return r

def rw(ins):
    t = ins.txt.split(";")[0].strip()
    m = t.split()[0]
    rest = t[len(m):].strip()
    ops = [o.strip() for o in rest.split(",")] if rest else []
    k = ins.kind
    R, Wr = set(), set()
    allr = [regs_of(o) for o in ops]
    if k == "mfma":
        Wr = allr[0]; R = allr[1] | allr[2] | allr[3]
    elif k == "ds":
        if m.startswith("ds_read"): Wr = allr[0]; R = set().union(*allr[1:])
        else: R = set().union(*allr)
    elif k == "vmem":
        if " lds" in t: R = set().union(*allr) | {("m0", 0)}
        elif m.startswith("buffer_load"): Wr = allr[0]; R = set().union(*allr[1:])
        else: R = set().union(*allr)
    elif k in ("valu", "trans"):
        if "swap" in m: Wr = allr[0] | allr[1]; R = set(Wr)
        else:
            Wr = allr[0]; R = set().union(*allr[1:]) if len(allr) > 1 else set()
            if m.startswith("v_cndmask") and len(ops) == 3: R.add(("vcc", 0))
            if m.startswith("v_fmac") or m.startswith("v_dot2c"): R |= Wr
    elif k == "salu":
        if m.startswith("s_cmp") or m in ("s_nop", "s_sleep", "s_setprio", "s_endpgm"): R = set().union(*allr) if allr else set()
        else:
            Wr = allr[0]; R = set().union(*allr[1:]) if len(allr) > 1 else set()
    elif k == "smem":
        Wr = allr[0]; R = set().union(*allr[1:]) if len(allr) > 1 else set()
    elif k == "br":
        if "vcc" in m: R = {("vcc", 0)}
    return R, Wr

def states(ins):
    if ins.kind in ("label", "raw"): return 0
    if ins.txt.startswith("s_nop"): return int(ins.txt.split()[1]) + 1
    return 1

def check(prog, name=""):
    errs = []
    info = [(i, rw(i)) for i in prog]
    pend_ds = []; pend_vm = []
    for n, (ins, (R, Wr)) in enumerate(info):
        k = ins.kind
        if k in ("label", "raw"): continue
        if k == "wait":
            mv = re.search(r"vmcnt\((\d+)\)", ins.txt); ml = re.search(r"lgkmcnt\((\d+)\)", ins.txt)
            if mv:
                c = int(mv.group(1)); pend_vm = pend_vm[len(pend_vm) - c:] if c < len(pend_vm) else pend_vm
                if c == 0: pend_vm = []
            if ml:
                c = int(ml.group(1)); pend_ds = pend_ds[len(pend_ds) - c:] if c < len(pend_ds) else pend_ds
                if c == 0: pend_ds = []
            continue
        touch = R | Wr
        for lst, nm in ((pend_ds, "ds"), (pend_vm, "vm")):
            for (pi, pw) in lst:
                if pw & touch: errs.append(f"{name}[{n}] {ins.txt}  touches pending {nm} dest of: {prog[pi].txt}")
        if k == "ds" or k == "smem": pend_ds.append((n, Wr))
        if k == "vmem": pend_vm.append((n, Wr))
        if len(pend_vm) > 63: errs.append(f"{name}[{n}] more than 63 vmem outstanding")
        dist = 0
        for j in range(n - 1, max(-1, n - 40), -1):
            p, (pR, pW) = info[j]
            if p.kind in ("label", "raw"): continue
            if dist >= 12: break
            need = 0
            pv = p.kind in ("valu", "trans")
            if pv and k == "mfma" and (pW & R): need = 2
            if p.kind == "mfma":
                if k in ("valu", "trans") and (pW & touch): need = 8
                if k in ("ds", "vmem") and (pW & touch): need = 8
                if k == "mfma":
                    ops = [o.strip() for o in ins.txt.split(None, 1)[1].split(",")]
                    if pW & (regs_of(ops[1]) | regs_of(ops[2])): need = 8
                    c = regs_of(ops[3])
                    if (pW & c) and pW != c: need = max(need, 6)
                    if (pW & Wr) and not (pW == c and pW == Wr): need = max(need, 6)
                if k in ("valu", "trans"):
                    pops = [o.strip() for o in p.txt.split(None, 1)[1].split(",")]
                    if regs_of(pops[3]) & Wr: need = max(need, 3)
            if p.kind == "trans" and k == "valu" and (pW & R): need = max(need, 1)
            if pv and "permlane" in ins.txt and (pW & R): need = max(need, 2)
            if pv and "readfirstlane" in ins.txt and (pW & R): need = max(need, 1)
            sW = {r for r in pW if r[0] in ("s", "vcc")}
            if pv and sW:
                if k in ("valu", "trans") and (sW & R): need = max(need, 2)
                if k == "vmem" and (sW & R): need = max(need, 5)
            if p.kind == "salu" and ("m0", 0) in pW and k == "vmem" and ("m0", 0) in R: need = max(need, 1)
            if p.kind == "vmem" and "store_dwordx4" in p.txt:
                data = regs_of(p.txt.split(None, 1)[1].split(",")[0])
                if data & Wr: need = max(need, 2)
            if need > dist: errs.append(f"{name}[{n}] {ins.txt}  needs {need} states after [{j}] {p.txt} (has {dist})")
            dist += states(p)
    return errs
```

```python
import sys, math, struct
from asmlib import *

KN = "standalone__gqa_block_cached__near_ridge_kernel"
OPT = dict(stamps=False, nt_kv=True, nt_x=False, nt_w=False, pretouch=True, nostore=False, p1st=False,
           map2=True, nvar=2, stag=2, dsp=5, dst=-11, kv0=12, kvper=2, xlead=4, early=True, zero='')
for a in sys.argv[2:]:
    k, v = a.split("=")
    assert k in OPT, k
    OPT[k] = type(OPT[k])(int(v)) if not isinstance(OPT[k], str) else v
DSP = OPT["dsp"]; DST = OPT["dst"]

def f2u(f): return struct.unpack("<I", struct.pack("<f", f))[0]
CSCALE = math.log2(math.e) / 16.0
THRESH = 8.0
KS = 16896
VB = 4 * KS
WQB = 3 * KS
OXB = 65536
XU = [0, 12288, 24576, 36864, 118272, 130560, 142848]
NT_KV = " nt" if OPT["nt_kv"] else ""
NT_X = " nt" if OPT["nt_x"] else ""
NT_W = " nt" if OPT["nt_w"] else ""

sX, sK, sV, sWq, sWo, sWs, sDbg, sOut = 20, 24, 28, 32, 36, 40, 44, 48
sB, sH, sRot, sC, sT, sKVm, sWqm, sWom = 52, 53, 54, 55, 56, 57, 58, 59
sWqOff = 60
sTmp, sKo, sVo = 67, 68, 69
sKx, sVx, sM0V, sRd = 70, 72, 74, 75
sCg, sTmp2, sSt, sWoW = 76, 77, 78, 79
sU = 80
sXOff, sXm = 84, 91
STAMPS = [96, 98, 100, 4, 6, 8, 12, 14, 16]
def srd(d): return f"s[{d}:{d+3}]"
vK, vV, vK0, vV0 = 1, 2, 3, 4
vD = 5
vMx = 9
vA = 10
vL16 = 14
vT = 15
SB = [16, 40]
NEGM = 64
SPARE = 76
OB = 88
ACC1 = [16, 64, 112, 64]
FR1 = 160
vW = 224
vXo = 228
vXr = 232
DUMMY = 236
aQ = 0
aL, aOnes = 108, 120
aFR = 128
aO7 = 192
aX = 88
def vr(b, n=4): return f"v[{b}:{b+n-1}]"
def ar(b, n=4): return f"a[{b}:{b+n-1}]"
def Qf(rt, ds): return ar(aQ + 4 * (ds * 3 + rt))
def Xf(slot, rt): return ar(aX + 4 * (slot * 3 + rt))
def Oacc(dt, rt):
    ks = dt >> 1
    if ks < 7: return vr(OB + (ks * 3 + rt) * 8 + (dt & 1) * 4)
    return ar(aO7 + rt * 8 + (dt & 1) * 4)
def Sreg(buf, rt, T): return SB[buf] + rt * 8 + T * 4
MF = "v_mfma_f32_16x16x32_bf16"

class G: var = 0; nstamp = 0; last = False
def stamp(P, fine=False):
    if not OPT["stamps"]: return
    if OPT["p1st"] and not fine and G.nstamp > 0 and not G.last: return
    j = G.nstamp; G.nstamp += 1
    P += [Ins("s_memrealtime s[92:93]"), Ins("s_memtime s[94:95]"), Ins("s_waitcnt lgkmcnt(0)"),
          Ins(f"s_mov_b32 s{STAMPS[j]}, s92"), Ins(f"s_mov_b32 s{STAMPS[j]+1}, s94")]

def L(P, s):
    for line in s.strip().split("\n"):
        line = line.strip()
        if line: P.append(Ins(line))

def spaced(lst, items, e0, dmax, sp=None, lo=0):
    sp = sp or DSP
    k = 0
    for x in items:
        e = min(e0 + int(sp * k), dmax)
        if x[0].kind == "vmem":
            lst.append(Item(x, e, min(e + 1, dmax))); k += 1
        else:
            lst.append(Item(x, lo, max(e - 1, -1)))

def inline(P, grp):
    for x in grp:
        P += x
        if " m0," in x[-1].txt: P.append(Ins("s_nop 0"))

def wq_dma(s):
    r = []
    if s < 14:
        so = sWqOff + (s >> 1)
        if s & 1:
            r.append([Ins(f"s_add_u32 s{sTmp2}, s{so}, 262144")]); so = sTmp2
    else:
        so = sWqOff + (s - 14) % 7
        if (s - 14) % 7 == 0:
            r.append([Ins(f"s_xor_b32 s{sTmp}, s{sRd}, {2 + (s - 14) // 7}")])
            r.append([Ins(f"s_lshl_b32 s{sTmp}, s{sTmp}, 7")])
            r.append([Ins(f"s_lshl_b32 s{sTmp2}, s{sU+1}, 18")])
            r.append([Ins(f"s_add_u32 s{sTmp}, s{sTmp}, s{sTmp2}")])
            r.append([Ins(f"s_add_u32 s{sWq}, s10, s{sTmp}"), Ins(f"s_addc_u32 s{sWq+1}, s11, 0")])
    r.append([Ins(f"s_add_u32 m0, s{sWqm}, {(s % 4) * 16384}")])
    for ch in range(4):
        r.append([Ins(f"buffer_load_dwordx4 v{vW+ch}, {srd(sWq)}, s{so} offen offset:{ch*1024}{NT_W} lds", cost=2, tag=f"wq{s}")])
    return r

def x_dma(u, which=(0, 1, 2)):
    r = [[Ins(f"s_add_u32 m0, s{sXm}, {XU[u]}")]]
    for i in which:
        r.append([Ins(f"buffer_load_dwordx4 v{vXo+i}, {srd(sX)}, s{sXOff+u} offen offset:{i*1024}{NT_X} lds", cost=2, tag=f"x{u}")])
    return r

def kv_group(isK, m0txt, tag, ks=(0, 1, 2, 3)):
    s, o = (sK, sKo) if isK else (sV, sVo)
    r = [[Ins(m0txt)]]
    for k in ks:
        r.append([Ins(f"buffer_load_dwordx4 v{vD+k}, {srd(s)}, s{o} offen offset:{k*1056}{NT_KV} lds", cost=2, tag=tag)])
    if 3 in ks: r.append([Ins(f"s_add_u32 s{o}, s{o}, 16384")])
    return r

def wo_dma(sg):
    i = sg & 3
    r = []
    if i == 0 and sg > 0:
        r.append([Ins(f"s_add_u32 s{sCg}, s{sCg}, 128")])
        r.append([Ins(f"s_sub_u32 s{sTmp2}, s{sCg}, s{sWoW}")])
        r.append([Ins(f"s_cmp_eq_u32 s{sTmp2}, 896"), Ins(f"s_cselect_b32 s{sCg}, s{sWoW}, s{sCg}")])
    r.append([Ins(f"s_add_u32 s{sTmp2}, s{sCg}, s{sWqOff+i}")])
    r.append([Ins(f"s_add_u32 m0, s{sWom}, {i*16384}")])
    for ch in range(4):
        r.append([Ins(f"buffer_load_dwordx4 v{vD+ch}, {srd(sWo)}, s{sTmp2} offen offset:{ch*1024}{NT_W} lds", cost=2, tag=f"wo{sg}")])
    return r

def mksrd(d, base, add, size, neg=None):
    if {sK: "k", sV: "k", sWq: "q", sX: "x", sWo: "o"}.get(d, "-") in OPT["zero"]: size = 0
    t = f"s_add_u32 s{d}, s{base}, {add}\ns_addc_u32 s{d+1}, s{base+1}, {neg or 0}\ns_and_b32 s{d+1}, s{d+1}, 0xffff\n"
    return t + f"s_mov_b32 s{d+2}, {size}\ns_mov_b32 s{d+3}, 0x20000\n"

def prologue(P):
    L(P, "s_cmp_ge_u32 s2, 256\ns_cbranch_scc1 L_end\ns_load_dwordx16 s[4:19], s[0:1], 0")
    L(P, f"v_lshrrev_b32 v{vT}, 6, v0\nv_and_b32 v0, 63, v0")
    if OPT["map2"]:
        L(P, f"""s_lshr_b32 s{sB}, s2, 4
v_readfirstlane_b32 s3, v{vT}
s_lshl_b32 s{sTmp}, s2, 2
s_and_b32 s{sTmp}, s{sTmp}, 16
s_add_u32 s{sB}, s{sB}, s{sTmp}
s_and_b32 s{sH}, s2, 3
s_lshl_b32 s{sH}, s{sH}, 1
s_bfe_u32 s{sTmp}, s2, 0x10003
s_add_u32 s{sH}, s{sH}, s{sTmp}""")
    else:
        L(P, f"s_lshr_b32 s{sB}, s2, 3\nv_readfirstlane_b32 s3, v{vT}\ns_and_b32 s{sH}, s2, 7")
    a, b, c = DUMMY, DUMMY + 1, DUMMY + 2
    L(P, f"""
s_mul_i32 s{sTmp}, s{sB}, 37
s_lshr_b32 s{sTmp}, s{sTmp}, 8
s_mul_i32 s{sTmp}, s{sTmp}, 7
s_sub_u32 s{sRot}, s{sB}, s{sTmp}
s_and_b32 s{sRd}, s{sB}, 3
v_lshlrev_b32 v{vL16}, 4, v0
v_lshrrev_b32 v{a}, 1, v0
v_lshrrev_b32 v{b}, 4, v0
v_xor_b32 v{a}, v{a}, v{b}
v_and_b32 v{a}, 3, v{a}
v_lshrrev_b32 v{b}, 1, v{a}
v_lshlrev_b32 v{b}, 2, v{b}
v_and_b32 v{c}, 1, v{a}
v_or_b32 v{b}, v{b}, v{c}
v_and_b32 v{c}, 1, v0
v_lshl_or_b32 v{b}, v{c}, 1, v{b}
v_lshlrev_b32 v{b}, 4, v{b}
v_bfe_u32 v{c}, v0, 3, 2
v_lshl_add_u32 v{b}, v{c}, 13, v{b}
v_lshrrev_b32 v{c}, 5, v0
v_lshl_add_u32 v{vW}, v{c}, 16, v{b}
v_add_u32 v{vW+1}, {4*8192-1024}, v{vW}
v_add_u32 v{vW+2}, {16*8192-2048}, v{vW}
v_add_u32 v{vW+3}, {20*8192-3072}, v{vW}
s_and_b32 s{sU}, s3, 1
s_lshr_b32 s{sU+1}, s3, 1
s_lshl_b32 s{sU+2}, s{sU}, 9
s_lshl_b32 s{sWqm}, s3, 12
s_add_u32 s{sWqm}, s{sWqm}, {WQB}
s_mul_i32 s{sXm}, s3, 3072
s_mul_i32 s{sTmp}, s3, 24
v_lshrrev_b32 v{a}, 3, v0
v_add_u32 v{a}, s{sTmp}, v{a}
v_and_b32 v{c}, 7, v0
""")
    for i in range(3):
        L(P, f"""
v_bfe_u32 v{b}, v{a}, 1, 3
v_xor_b32 v{b}, v{b}, v{c}
v_lshlrev_b32 v{b}, 4, v{b}
v_mul_u32_u24 v{vXo+i}, 896, v{a}
v_add_u32 v{vXo+i}, v{vXo+i}, v{b}
""")
        if i: L(P, f"v_subrev_u32 v{vXo+i}, {1024*i}, v{vXo+i}")
        if i < 2: L(P, f"v_add_u32 v{a}, 8, v{a}")
    L(P, f"s_mov_b32 s{sCg}, s{sRot}")
    def koff(st):
        L(P, f"""
s_lshl_b32 s{sTmp}, s{sCg}, 19
s_add_u32 s{sWqOff+st}, s{sTmp}, s{sU+2}
s_lshl_b32 s{sXOff+st}, s{sCg}, 7
s_add_u32 s{sCg}, s{sCg}, 1
s_cmp_eq_u32 s{sCg}, 7
s_cselect_b32 s{sCg}, 0, s{sCg}
""")
    koff(0); koff(1)
    L(P, f"""
s_lshl_b32 s{sTmp}, s{sH}, 10
s_xor_b32 s{sTmp2}, s{sRd}, s{sU+1}
s_lshl_b32 s{sTmp2}, s{sTmp2}, 7
s_mul_i32 s{sSt}, s{sB}, 86016
s_waitcnt lgkmcnt(0)
""")
    stamp(P)
    L(P, f"s_add_u32 s10, s10, s{sTmp}\ns_addc_u32 s11, s11, 0\ns_and_b32 s11, s11, 0xffff")
    L(P, mksrd(sWq, 10, f"s{sTmp2}", 447 * 8192 + 640))
    inline(P, wq_dma(0))
    L(P, mksrd(sX, 4, f"s{sSt}", 86016))
    inline(P, x_dma(0) + wq_dma(1) + wq_dma(2) + x_dma(1))
    if OPT["pretouch"]:
        n = 16 if OPT["map2"] else 32
        rows = 448 // n
        L(P, f"""
s_and_b32 s{sTmp}, s{sB}, {n-1}
s_mul_i32 s{sTmp}, s{sTmp}, {rows}
s_lshl_b32 s{sTmp2}, s3, 3
s_add_u32 s{sTmp2}, s{sTmp2}, s{sTmp}
s_add_u32 s{sTmp}, s{sTmp}, {rows-1}
v_lshrrev_b32 v{a}, 3, v0
v_add_u32 v{a}, s{sTmp2}, v{a}
v_min_u32 v{a}, s{sTmp}, v{a}
v_lshlrev_b32 v{a}, 13, v{a}
v_and_b32 v{b}, 7, v0
v_lshl_add_u32 v{a}, v{b}, 7, v{a}
""")
        L(P, mksrd(sOut, 10, 0, 447 * 8192 + 1024))
        P.append(Ins(f"buffer_load_dword v{DUMMY+4}, v{a}, {srd(sOut)}, 0 offen"))
    for st in range(2, 7): koff(st)
    a, b, c = DUMMY + 8, DUMMY + 9, DUMMY + 10
    L(P, f"""
s_lshl_b32 s{sTmp}, s{sB}, 3
s_add_u32 s{sTmp}, s{sTmp}, s{sH}
s_lshl_b32 s{sTmp}, s{sTmp}, 18
s_sub_u32 s{sTmp}, s{sTmp}, 96
s_cselect_b32 s{sTmp2}, -1, 0
""")
    L(P, mksrd(sK, 6, f"s{sTmp}", 262144 + 96, f"s{sTmp2}") + mksrd(sV, 8, f"s{sTmp}", 262144 + 96, f"s{sTmp2}"))
    L(P, f"s_mul_i32 s{sTmp}, s{sH}, 458752\n" + mksrd(sWo, 12, f"s{sTmp}", 458752))
    L(P, f"s_mul_i32 s{sTmp}, s{sB}, 688128\n" + mksrd(sWs, 18, f"s{sTmp}", 688128))
    L(P, mksrd(sOut, 14, f"s{sSt}", 86016) + mksrd(sDbg, 16, 0, 256))
    L(P, f"""
s_mov_b32 s{sC}, {hex(f2u(CSCALE))}
s_mov_b32 s{sT}, {hex(f2u(THRESH))}
s_mul_i32 s{sKVm}, s3, 4224
s_lshl_b32 s{sKo}, s3, 12
s_mov_b32 s{sVo}, s{sKo}
s_mov_b32 s{sKx}, 0
s_mov_b32 s{sKx+1}, {KS}
s_mov_b32 s{sVx}, {VB+3*KS}
s_mov_b32 s{sVx+1}, {VB+2*KS}
s_add_u32 s{sM0V}, s{sKVm}, {VB+KS}
s_lshl_b32 s{sWom}, s{sU}, 13
s_lshl_b32 s{sTmp}, s{sU+1}, 12
s_add_u32 s{sWom}, s{sWom}, s{sTmp}
s_mul_i32 s{sWoW}, s{sU}, {256*896}
s_mul_i32 s{sTmp}, s{sU+1}, {32*896}
s_add_u32 s{sWoW}, s{sWoW}, s{sTmp}
s_lshl_b32 s{sTmp}, s{sRd}, 7
v_xor_b32 v{vD+3}, s{sTmp}, v{vL16}
v_add_u32 v{vD}, 96, v{vD+3}
v_add_u32 v{vD+1}, 64, v{vD+3}
v_add_u32 v{vD+2}, 32, v{vD+3}
v_and_b32 v{a}, 7, v0
v_mul_u32_u24 v{a}, 1056, v{a}
v_bfe_u32 v{b}, v0, 3, 1
v_lshl_add_u32 v{a}, v{b}, 9, v{a}
v_lshrrev_b32 v{b}, 4, v0
v_lshl_add_u32 v{vK0}, v{b}, 4, v{a}
v_mov_b32 v{vK}, v{vK0}
v_bfe_u32 v{a}, v0, 2, 3
v_mul_u32_u24 v{b}, 1056, v{a}
v_lshrrev_b32 v{c}, 5, v0
v_lshl_add_u32 v{b}, v{c}, 9, v{b}
v_and_b32 v{c}, 3, v0
v_lshl_add_u32 v{vV0}, v{c}, 3, v{b}
v_add_u32 v{vV}, {VB+3*KS}, v{vV0}
v_lshlrev_b32 v{b}, 7, v{a}
v_lshl_add_u32 v{b}, v{c}, 3, v{b}
v_lshrrev_b32 v{c}, 5, v0
v_lshl_add_u32 v{b}, v{c}, 11, v{b}
s_lshl_b32 s{sTmp}, s{sU}, 12
s_add_u32 s{sTmp}, s{sTmp}, {WQB}
v_add_u32 v{b}, s{sTmp}, v{b}
v_lshrrev_b32 v{a}, 1, v{a}
""")
    for t in range(4):
        L(P, f"v_xor_b32 v{c}, {t}, v{a}\nv_lshl_add_u32 v{vA+t}, v{c}, 5, v{b}")
    L(P, f"""
v_and_b32 v{a}, 15, v0
v_lshlrev_b32 v{b}, 7, v{a}
s_mul_i32 s{sTmp}, s{sU+1}, 6144
v_add_u32 v{b}, s{sTmp}, v{b}
v_lshrrev_b32 v{a}, 1, v{a}
v_lshrrev_b32 v{c}, 4, v0
v_xor_b32 v{a}, v{a}, v{c}
v_lshl_add_u32 v{vXr}, v{a}, 4, v{b}
v_xor_b32 v{a}, 4, v{a}
v_lshl_add_u32 v{vXr+1}, v{a}, 4, v{b}
""")

def q_epilogue(dg, win, sA, sB_, sC_):
    base = ACC1[dg]
    u = 0
    for e in range(2):
        for rt in range(3):
            e0, d0 = win(u); u += 1
            A = base + ((2 * e) * 3 + rt) * 4; B = base + ((2 * e + 1) * 3 + rt) * 4
            for k in range(4): sA.append(Item(Ins(f"v_mul_f32 v{A+k}, s{sC}, v{A+k}"), e0, d0 - 4))
            for k in range(4): sA.append(Item(Ins(f"v_mul_f32 v{B+k}, s{sC}, v{B+k}"), e0, d0 - 4))
            cv = [Item(Ins(x), e0, d0 - 3) for x in (
                  f"v_cvt_pk_bf16_f32 v{A}, v{A}, v{A+1}", f"v_cvt_pk_bf16_f32 v{B}, v{B}, v{B+1}",
                  f"v_cvt_pk_bf16_f32 v{A+1}, v{A+2}, v{A+3}", f"v_cvt_pk_bf16_f32 v{B+1}, v{B+2}, v{B+3}")]
            sA += cv
            sw = [Item(Ins(f"v_permlane16_swap_b32 v{A}, v{B}", cost=2), e0, d0 - 1, deps=cv, lag=2),
                  Item(Ins(f"v_permlane16_swap_b32 v{A+1}, v{B+1}", cost=2), e0, d0 - 1, deps=cv, lag=2)]
            sB_ += sw
            q = aQ + 4 * ((2 * dg + e) * 3 + rt)
            for dst, src, dep in ((q, A, 0), (q + 2, B, 0), (q + 1, A + 1, 1), (q + 3, B + 1, 1)):
                sC_.append(Item(Ins(f"v_accvgpr_write_b32 a{dst}, v{src}"), e0, d0, deps=[sw[dep]]))

def kread(fi, ds, T):
    return Ins(f"ds_read_b128 {ar(aFR + 4*(fi % 16))}, v{vK} offset:{T*8448 + ds*64}", tag=f"f{fi}")
def vread(fi, dt):
    b = aFR + 4 * (fi % 16)
    return [Ins(f"ds_read_b64_tr_b16 {ar(b,2)}, v{vV} offset:{dt*32}", tag=f"f{fi}x"),
            Ins(f"ds_read_b64_tr_b16 {ar(b+2,2)}, v{vV} offset:{8448 + dt*32}", tag=f"f{fi}")]

def rdl(s, f):
    if s == 0: return -1 if f < 4 else 2 * f - 6
    return 24 * s + min(3 * (f & 6) - 7 + (2 if f >= 2 else 0), 7)

def phase1_and_qk0(P):
    SG = OPT["stag"] * G.var
    M = []
    for s in range(28):
        for f in range(8):
            hi, t = f >> 2, f & 3
            if s < 14: dg, slot, first = hi, s, s == 0
            else: dg, slot, first = 2 + (s - 14) // 7, 2 * ((s - 14) % 7) + hi, ((s - 14) % 7 == 0 and hi == 0)
            F = 8 * s + f
            for rt in range(3):
                acc = vr(ACC1[dg] + (t * 3 + rt) * 4)
                M.append(Ins(f"{MF} {acc}, {vr(FR1 + 4*(F % 16))}, {Xf(slot, rt)}, {'0' if first else acc}"))
    n1 = len(M)
    for ds in range(8):
        for T in range(2):
            fi = ds * 2 + T
            for rt in range(3):
                acc = vr(Sreg(0, rt, T))
                M.append(Ins(f"{MF} {acc}, {ar(aFR + 4*(fi % 16))}, {Qf(rt, ds)}, {'0' if ds == 0 else acc}"))
    sync, reads, dma, epi, epi2, epi3, misc = [], [], [], [], [], [], []
    tiles = [(True, 0, "K0"), (True, KS, "K1"), (True, 2 * KS, "K2"), (False, VB + 3 * KS, "V0"), (False, VB + 4 * KS, "V1")]
    kvplan = {}
    per = OPT["kvper"]
    for i in range(0, 20, per): kvplan[OPT["kv0"] + i // per] = tiles[i // 4] + (list(range(i % 4, i % 4 + per)),)
    assert OPT["kv0"] + 12 // per >= 14 and max(kvplan) < 26
    kvplan[26] = (True, 3 * KS, "K3", [0, 1, 2, 3]); kvplan[27] = (False, VB, "V2", [0, 1, 2, 3])
    xplan = {}
    for u in range(2, 7):
        s0 = max(2 * u - OPT["xlead"], 0)
        xplan.setdefault(s0, []).append((u, (0, 1))); xplan.setdefault(s0 + 1, []).append((u, (2,)))
    for s in range(29):
        g0 = max(24 * s - 13, -1)
        if s < 28:
            tg = [f"wq{s}"] + ([f"x{s//2}"] if (s < 14 and s % 2 == 0) else [])
            w = W(vm=tg, lg=0 if s > 0 else None)
        else:
            w = W(vm=["V0", "K1"], lg=0)
        xs = []
        if OPT["p1st"] and s in (0, 4, 14, 21, 28): stamp(xs, True)
        sync.append(Item([w, Ins("s_barrier")] + xs, g0, g0))
        if s < 28:
            def xrd(slot, d):
                u = slot >> 1
                for rt in range(3):
                    off = (XU[u] if u < 4 else XU[u] - XU[4]) + rt * 2048
                    reads.append(Item(Ins(f"ds_read_b128 {Xf(slot, rt)}, v{vXr + (slot & 1)} offset:{off}", tag=f"xr{slot}"), g0, d))
            if s == 0: xrd(0, -1)
            for f in range(8):
                hi, t = f >> 2, f & 3
                F = 8 * s + f
                b = FR1 + 4 * (F % 16)
                off = (s % 4) * 16384 + hi * 8192
                reads.append(Item(Ins(f"ds_read_b64_tr_b16 {vr(b,2)}, v{vA+t} offset:{off}", tag=f"w{F}x"), g0, rdl(s, f)))
                reads.append(Item(Ins(f"ds_read_b64_tr_b16 {vr(b+2,2)}, v{vA+t} offset:{off+1024}", tag=f"w{F}"), g0, rdl(s, f)))
                if f == 1 and 0 < s < 14: xrd(s, 24 * s - 5)
            if s == 7:
                for k in range(2): reads.append(Item(Ins(f"v_add_u32 v{vXr+k}, {XU[4]}, v{vXr+k}"), g0, 24 * s + 10))
            t0 = f"xr{s}" if 0 < s < 14 else f"w{8*s+1}"
            sync.append(Item(W(lg=t0), 24 * s - 1, 24 * s - 1))
            sync.append(Item(W(lg=f"w{8*s+3}"), 24 * s + 5, 24 * s + 5))
        else:
            for fi in range(16):
                first = n1 + 3 * fi
                reads.append(Item(kread(fi, fi >> 1, fi & 1), max(first - 15, g0 + 1), first - (first - n1) % 6 - 6))
            for i in range(8):
                sync.append(Item(W(lg=f"f{2*i+1}"), n1 + 6 * i - 1, n1 + 6 * i - 1))
        grp = []
        if s + 3 < 28: grp += wq_dma(s + 3)
        for (u, wh) in xplan.get(s, []): grp += x_dma(u, wh)
        if s in kvplan:
            isK, off, tag, ks = kvplan[s]
            grp += kv_group(isK, f"s_add_u32 m0, s{sKVm}, {off}", tag, ks)
        nv = sum(1 for x in grp if x[0].kind == "vmem")
        if s == 0: spaced(dma, grp, SG, 10, 2, lo=-1)
        elif nv: spaced(dma, grp, 24 * s - 12 + SG, 24 * s + 11, min(DSP, 24 / nv))
    wins = {1: (336 + 6, 16, 50), 0: (336 + 6 + 96, 20, 60), 2: (504 + 60, 16, 40)}
    for dg in (1, 0, 2, 3):
        if dg < 3:
            e0, st, ln = wins[dg]
            lim = {1: 500, 0: n1 - 4, 2: n1 + 20}[dg]
            win = lambda u: (e0 + u * st, min(e0 + u * st + ln, lim))
        else: win = lambda u: (n1 + 2 + (0 if u < 3 else 3), n1 + (33 if u < 3 else 39))
        q_epilogue(dg, win, epi, epi2, epi3)
    misc.append(Item(Ins(f"v_mov_b32 v{vT}, 0x3f803f80"), n1 + 10, n1 + 44))
    for k in range(4): misc.append(Item(Ins(f"v_accvgpr_write_b32 a{aOnes+k}, v{vT}"), n1 + 10, n1 + 45))
    misc.append(Item(Ins(f"v_add_u32 v{vK}, s{sKx+1}, v{vK0}"), n1 + 43, n1 + 45))
    P += schedule(M, sync, [tighten(reads), tighten(dma), tighten(epi2), tighten(epi3), tighten(epi), tighten(misc)], name="p1", verbose=True)

def crossmax(r, t):
    return [f"v_mov_b32 v{t}, v{r}", "s_nop 1", f"v_permlane32_swap_b32 v{r}, v{t}", f"v_max_f32 v{r}, v{r}, v{t}",
            f"v_mov_b32 v{t}, v{r}", "s_nop 1", f"v_permlane16_swap_b32 v{r}, v{t}", f"v_max_f32 v{r}, v{r}, v{t}"]

def init_path(P):
    for fi in range(4): P.append(kread(16 + fi, fi >> 1, fi & 1))
    if OPT["early"]:
        L(P, "s_barrier")
        inline(P, kv_group(True, f"s_mov_b32 m0, s{sKVm}", "Hm"))
    else: L(P, "s_nop 3")
    X = SPARE
    for rt in range(3):
        s = Sreg(0, rt, 0)
        L(P, f"v_max3_f32 v{X+rt}, v{s}, v{s+1}, v{s+2}\nv_max3_f32 v{X+rt}, v{X+rt}, v{s+3}, v{s+4}\n"
             f"v_max3_f32 v{X+rt}, v{X+rt}, v{s+5}, v{s+6}\nv_max_f32 v{X+rt}, v{X+rt}, v{s+7}")
    for sw in ("v_permlane32_swap_b32", "v_permlane16_swap_b32"):
        for rt in range(3): L(P, f"v_mov_b32 v{X+3+rt}, v{X+rt}")
        for rt in range(3): L(P, f"{sw} v{X+rt}, v{X+3+rt}")
        for rt in range(3): L(P, f"v_max_f32 v{X+rt}, v{X+rt}, v{X+3+rt}")
    for rt in range(3):
        for k in range(4): L(P, f"v_sub_f32 v{NEGM+4*rt+k}, 0, v{X+rt}")
    for rt in range(3):
        s = Sreg(0, rt, 0)
        for k in range(8): L(P, f"v_sub_f32 v{s+k}, v{s+k}, v{X+rt}")
        if rt == 0 and OPT["early"]: inline(P, kv_group(False, f"s_mov_b32 m0, s{sM0V}", "Hm"))
    if not OPT["early"]: L(P, "s_barrier")

def rare_path(R, site, buf):
    L(R, f"L_rare_{site}:\ns_nop 7\ns_nop 1")
    X = SPARE
    for rt in range(3):
        s = Sreg(buf, rt, 0)
        L(R, f"v_max3_f32 v{X}, v{s}, v{s+1}, v{s+2}\nv_max3_f32 v{X}, v{X}, v{s+3}, v{s+4}\n"
             f"v_max3_f32 v{X}, v{X}, v{s+5}, v{s+6}\nv_max3_f32 v{X}, v{X}, v{s+7}, 0")
        L(R, "\n".join(crossmax(X, X + 1)))
        for k in range(8): L(R, f"v_sub_f32 v{s+k}, v{s+k}, v{X}")
        for k in range(4): L(R, f"v_sub_f32 v{NEGM+4*rt+k}, v{NEGM+4*rt+k}, v{X}")
        L(R, f"v_sub_f32 v{X+1}, 0, v{X}\nv_exp_f32 v{X+1}, v{X+1}\ns_nop 0")
        for ks in range(7):
            for k in range(8): L(R, f"v_mul_f32 v{OB+(ks*3+rt)*8+k}, v{OB+(ks*3+rt)*8+k}, v{X+1}")
        for a in [aO7 + rt * 8 + k for k in range(8)] + [aL + 4 * rt + k for k in range(4)]:
            L(R, f"v_accvgpr_read_b32 v{X+2}, a{a}\nv_mul_f32 v{X+2}, v{X+2}, v{X+1}\nv_accvgpr_write_b32 a{a}, v{X+2}")
    L(R, f"s_nop 1\ns_branch L_ret_{site}")

def iteration(P, j):
    SG = OPT["stag"] * G.var
    p = j & 1
    last = (j == 15)
    site = ("i0" if j == 0 else ("A" if j & 1 else "B")) + f"_{G.var}"
    FK = 16 + 32 * j
    FV = FK + 16
    FN = FV + 16
    M = []
    if not last:
        for ds in range(8):
            for T in range(2):
                for rt in range(3):
                    acc = vr(Sreg(1 - p, rt, T))
                    c = vr(NEGM + 4 * rt) if ds == 0 else acc
                    M.append(Ins(f"{MF} {acc}, {ar(aFR + 4*((FK + 2*ds + T) % 16))}, {Qf(rt, ds)}, {c}"))
    nq = len(M)
    for rt in range(3):
        c = "0" if j == 0 else ar(aL + 4 * rt)
        M.append(Ins(f"{MF} {ar(aL+4*rt)}, {ar(aOnes)}, {vr(Sreg(p, rt, 0))}, {c}"))
    n0 = len(M)
    for dt in range(16):
        for rt in range(3):
            c = "0" if j == 0 else Oacc(dt, rt)
            M.append(Ins(f"{MF} {Oacc(dt, rt)}, {ar(aFR + 4*((FV + dt) % 16))}, {vr(Sreg(p, rt, 0))}, {c}"))
    n = len(M)
    sync, reads, soft, cvts, dma, ring, chk = [], [], [], [], [], [], []
    gbar = n - 11
    for rt in range(3):
        s = Sreg(p, rt, 0)
        dl = nq - 3 + rt if not last else -1
        ex = [Item(Ins(f"v_exp_f32 v{s+k}, v{s+k}", cost=2), -1 if last else 0, max(dl - 1, -1)) for k in range(8)]
        cv = [Item(Ins(f"v_cvt_pk_bf16_f32 v{s+k}, v{s+2*k}, v{s+2*k+1}"), -1 if last else 0, dl, deps=ex[2*k:2*k+2]) for k in range(4)]
        soft += ex; cvts += cv
    if last: cvts.append(Item(Ins("s_nop 1"), -1, -1))
    if not last:
        for fi in range(4, 16):
            first = 3 * fi
            reads.append(Item(kread(FK + fi, fi >> 1, fi & 1), max(first - 15, 0), first - first % 6 - 6))
        for i in range(8):
            sync.append(Item(W(lg=f"f{FK+2*i+1}"), 6 * i - 1, 6 * i - 1))
    for dt in range(16):
        first = n0 + 3 * dt
        wpos = first - (3 * dt) % 6 - 1
        for x in vread(FV + dt, dt): reads.append(Item(x, max(first - 16, -1), max(wpos - 5, -1)))
    for i in range(8):
        sync.append(Item(W(lg=f"f{FV+2*i+1}"), n0 + 6 * i - 1, n0 + 6 * i - 1))
    if not last:
        if OPT["early"]:
            gbar = nq + 1
            tgt = {0: ["V1", "K2"], 1: ["V2", "K3"], 2: "Hm"}.get(j, f"H{j-3}")
            sync.append(Item([W(vm=tgt), Ins("s_barrier")], gbar, gbar))
            for fi in range(4):
                reads.append(Item(kread(FN + fi, fi >> 1, fi & 1), n - 11, n - 6))
            d0 = gbar + 2 + SG
            spaced(dma, kv_group(True, f"s_add_u32 m0, s{sKx+1-p}, s{sKVm}", f"H{j}") + kv_group(False, f"s_add_u32 m0, s{sVx+1-p}, s{sKVm}", f"H{j}"),
                   d0, n - 2, 5, lo=nq - 6)
            e = nq
            ring.append(Item(Ins(f"s_add_u32 s{sTmp}, s{sKx+1-p}, {KS}"), e, n - 14))
            ring.append(Item([Ins(f"s_cmp_eq_u32 s{sTmp}, {4*KS}"), Ins(f"s_cselect_b32 s{sKx+p}, 0, s{sTmp}")], e, n - 13))
            ring.append(Item(Ins(f"v_add_u32 v{vK}, s{sKx+p}, v{vK0}"), e, n - 12))
            e = d0 + 5 * 4 + 1
            ring.append(Item(Ins(f"s_add_u32 s{sTmp}, s{sVx+p}, {KS}"), e, n - 2))
            ring.append(Item([Ins(f"s_cmp_eq_u32 s{sTmp}, {VB+5*KS}"), Ins(f"s_cselect_b32 s{sVx+1-p}, {VB}, s{sTmp}")], e, n - 2))
        else:
            tgt = {0: ["V1", "K2"], 1: "V2"}.get(j, f"G{j-2}")
            sync.append(Item([W(vm=tgt), Ins("s_barrier")], gbar, gbar))
            for fi in range(4):
                reads.append(Item(kread(FN + fi, fi >> 1, fi & 1), gbar + 1, n - 6))
            d = gbar - 1
            d0 = nq + SG
            spaced(dma, kv_group(True, f"s_add_u32 m0, s{sKx+p}, s{sKVm}", f"G{j}") + kv_group(False, f"s_mov_b32 m0, s{sM0V}", f"G{j}"),
                   d0, d, 5, lo=nq - 6)
            e = d0 + 2
            ring.append(Item(Ins(f"s_add_u32 s{sTmp}, s{sKx+1-p}, {KS}"), e, d))
            ring.append(Item([Ins(f"s_cmp_eq_u32 s{sTmp}, {4*KS}"), Ins(f"s_cselect_b32 s{sKx+p}, 0, s{sTmp}")], e, d))
            ring.append(Item(Ins(f"v_add_u32 v{vK}, s{sKx+p}, v{vK0}"), e, d))
            e = d0 + 5 * 4 + 1
            ring.append(Item(Ins(f"s_add_u32 s{sM0V}, s{sVx+1-p}, s{sKVm}"), e, n - 2))
            ring.append(Item(Ins(f"s_add_u32 s{sTmp}, s{sVx+p}, {KS}"), e, n - 2))
            ring.append(Item([Ins(f"s_cmp_eq_u32 s{sTmp}, {VB+5*KS}"), Ins(f"s_cselect_b32 s{sVx+1-p}, {VB}, s{sTmp}")], e, n - 2))
        vlast = n0 + 3 * 14 - 1 - 5
        ring.append(Item(Ins(f"v_add_u32 v{vV}, s{sVx+1-p}, v{vV0}"), vlast + 1, n - 1))
        s = SB[1 - p]
        e = nq + 6
        chk.append(Item(Ins(f"v_max3_f32 v{vMx}, v{s}, v{s+1}, v{s+2}"), e, n - 3))
        for k in range(3, 23, 2): chk.append(Item(Ins(f"v_max3_f32 v{vMx}, v{vMx}, v{s+k}, v{s+k+1}"), e, n - 3))
        chk.append(Item(Ins(f"v_max_f32 v{vMx}, v{vMx}, v{s+23}"), e, n - 3))
        chk.append(Item(Ins(f"v_cmp_lt_f32 vcc, s{sT}, v{vMx}"), e, n - 2))
    else:
        a, b, c = SPARE, SPARE + 1, SPARE + 2
        pre = f"""
v_lshrrev_b32 v{a}, 1, v0
v_lshrrev_b32 v{b}, 4, v0
v_xor_b32 v{a}, v{a}, v{b}
v_and_b32 v{a}, 3, v{a}
v_and_b32 v{c}, 1, v0
v_lshl_or_b32 v{a}, v{a}, 1, v{c}
v_lshrrev_b32 v{b}, 3, v0
v_mul_u32_u24 v{b}, 896, v{b}
v_lshl_add_u32 v{vD}, v{a}, 4, v{b}
v_add_u32 v{vD+1}, {8*896-1024}, v{vD}
v_add_u32 v{vD+2}, {16*896-2048}, v{vD}
v_add_u32 v{vD+3}, {24*896-3072}, v{vD}
"""
        pres = f"""
s_lshl_b32 s{sCg}, s{sRot}, 7
s_add_u32 s{sCg}, s{sCg}, s{sWoW}
s_mul_i32 s{sWqOff}, s{sRd}, {64*896}
s_xor_b32 s{sSt}, s{sRd}, 1
s_mul_i32 s{sWqOff+1}, s{sSt}, {64*896}
s_xor_b32 s{sSt}, s{sRd}, 2
s_mul_i32 s{sWqOff+2}, s{sSt}, {64*896}
s_xor_b32 s{sSt}, s{sRd}, 3
s_mul_i32 s{sWqOff+3}, s{sSt}, {64*896}
"""
        for x in pre.strip().split("\n"): ring.append(Item(Ins(x), 0, 10))
        for x in pres.strip().split("\n"): dma.append(Item(Ins(x), 0, 10))
        spaced(dma, wo_dma(0) + wo_dma(1) + wo_dma(2), 12 + G.var, n - 2, 3)
        rd = f"""
v_bfe_u32 v{a}, v0, 2, 3
v_lshlrev_b32 v{b}, 7, v{a}
v_and_b32 v{c}, 3, v0
v_lshl_add_u32 v{b}, v{c}, 3, v{b}
v_lshrrev_b32 v{c}, 5, v0
v_lshl_add_u32 v{b}, v{c}, 10, v{b}
v_lshrrev_b32 v{a}, 1, v{a}
s_lshl_b32 s{sTmp}, s{sU}, 1
v_xor_b32 v{a}, s{sTmp}, v{a}
v_xor_b32 v{c}, 1, v{a}
v_lshl_add_u32 v{a}, v{a}, 5, v{b}
v_lshl_add_u32 v{c}, v{c}, 5, v{b}
s_lshl_b32 s{sTmp}, s{sU}, 13
v_add_u32 v{vA}, s{sTmp}, v{a}
v_add_u32 v{vA+1}, s{sTmp}, v{c}
s_xor_b32 s{sTmp}, s{sTmp}, 8192
v_add_u32 v{vA+2}, s{sTmp}, v{a}
v_add_u32 v{vA+3}, s{sTmp}, v{c}
"""
        for x in rd.strip().split("\n"): ring.append(Item(Ins(x), 0, n - 1))
        for rt in range(3):
            chk.append(Item(Ins(f"v_accvgpr_read_b32 v{SPARE+4+2*rt}, a{aL+4*rt}"), 12, n - 1))
            chk.append(Item(Ins(f"v_rcp_f32 v{SPARE+4+2*rt}, v{SPARE+4+2*rt}", cost=2), 12, n - 1))
        P += [W(vm=0, lg=0), Ins("s_barrier")]
    P += schedule(M, sync, [tighten(reads), tighten(soft), tighten(cvts), tighten(dma), tighten(ring), tighten(chk)],
                  name=f"it{j}", verbose=(j in (1, 15)))
    if not last:
        L(P, f"s_cbranch_vccnz L_rare_{site}\nL_ret_{site}:")

def Ofrag(part, ks, rt):
    if ks < 7: return vr(OB + (ks * 3 + rt) * 8 + 4 * part)
    return vr(NEGM + 4 * rt) if part == 0 else ar(aO7 + rt * 8)

def transition(P):
    vx, vy = vK, vV
    L(P, f"""
s_mul_i32 s{sTmp}, s3, 24576
s_add_u32 s{sTmp}, s{sTmp}, {OXB}
v_add_u32 v{vx}, s{sTmp}, v{vL16}
s_xor_b32 s{sTmp}, s3, 1
s_mul_i32 s{sTmp}, s{sTmp}, 24576
s_add_u32 s{sTmp}, s{sTmp}, {OXB}
v_add_u32 v{vy}, s{sTmp}, v{vL16}
s_barrier
s_nop 1
""")
    for ks in range(8):
        for rt in range(3):
            rl = SPARE + 4 + 2 * rt
            if ks < 7:
                b = OB + (ks * 3 + rt) * 8; dst = b
            else:
                b = SB[0] + rt * 8; dst = NEGM + 4 * rt
                for k in range(8): L(P, f"v_accvgpr_read_b32 v{b+k}, a{aO7+rt*8+k}")
            for k in range(4):
                L(P, f"v_pk_mul_f32 {vr(b+2*k,2)}, {vr(b+2*k,2)}, {vr(rl,2)} op_sel_hi:[1,0]")
            for k in range(4):
                L(P, f"v_cvt_pk_bf16_f32 v{dst+k}, v{b+2*k}, v{b+2*k+1}")
            L(P, f"ds_write_b128 v{vx}, {vr(dst)} offset:{(ks*3+rt)*1024}")
    L(P, "s_waitcnt lgkmcnt(0)\ns_barrier")
    for ks in range(8):
        for rt in range(3):
            P.append(Ins(f"ds_read_b128 {Ofrag(1, ks, rt)}, v{vy} offset:{(ks*3+rt)*1024}", tag=f"ox{ks}"))
        if ks == 3: P.append(W(lg=12))
    L(P, f"""
s_mul_i32 s{sSt}, s3, {3*8192}
s_lshl_b32 s{sTmp}, s{sH}, 10
s_add_u32 s{sSt}, s{sSt}, s{sTmp}
""")

def phase3(P):
    SG = OPT["stag"] * G.var
    M = []
    F0 = 16 + 32 * 16
    for sg in range(28):
        si, i = sg >> 2, sg & 3
        for f in range(8):
            part, kk, tt = f >> 2, (f >> 1) & 1, f & 1
            for rt in range(3):
                acc = vr(SB[si & 1] + rt * 8 + tt * 4)
                c = "0" if (i == 0 and part == 0 and kk == 0) else acc
                M.append(Ins(f"{MF} {acc}, {ar(aFR + 4*((F0 + 8*sg + f) % 16))}, {Ofrag(part, 2*i+kk, rt)}, {c}"))
    sync, reads, dma, epi = [], [], [], []
    for s in range(28):
        g0 = max(24 * s - 13, -1)
        sync.append(Item([W(vm=f"wo{s}", lg=0), Ins("s_barrier")], g0, g0))
        for f in range(8):
            part, kk, tt = f >> 2, (f >> 1) & 1, f & 1
            F = F0 + 8 * s + f
            b = aFR + 4 * (F % 16)
            off = (s % 4) * 16384 + kk * 4096
            reads.append(Item(Ins(f"ds_read_b64_tr_b16 {ar(b,2)}, v{vA+2*part+tt} offset:{off}", tag=f"w{F}x"), g0, rdl(s, f)))
            reads.append(Item(Ins(f"ds_read_b64_tr_b16 {ar(b+2,2)}, v{vA+2*part+tt} offset:{off+2048}", tag=f"w{F}"), g0, rdl(s, f)))
        sync.append(Item(W(lg=f"w{F0+8*s+1}"), 24 * s - 1, 24 * s - 1))
        sync.append(Item(W(lg=f"w{F0+8*s+3}"), 24 * s + 5, 24 * s + 5))
        if s + 3 < 28:
            if s == 0: spaced(dma, wo_dma(3), 1 + G.var, 10, 3)
            else: spaced(dma, wo_dma(s + 3), 24 * s - 12 + SG, 24 * s + 10)
    sync.append(Item(W(lg=0), 24 * 28 - 13, 24 * 28 - 13))
    for si in range(7):
        e0 = 96 * (si + 1) + 6
        if si == 6: epi.append(Item(Ins("s_nop 7"), e0, e0))
        for rt in range(3):
            b = SB[si & 1] + rt * 8
            es = 96 * (si + 1) + 24 * rt - 12 + SG + 4 * DSP
            for k in range(4):
                epi.append(Item(Ins(f"v_cvt_pk_bf16_f32 v{b+k}, v{b+2*k}, v{b+2*k+1}"), e0, max(es - 1, e0 + 3)))
            if not OPT["nostore"]:
                epi.append(Item(Ins(f"buffer_store_dwordx4 {vr(b)}, v{vL16}, {srd(sWs)}, s{sSt} offen sc1", cost=2, tag="st"), es, max(es + 1, e0 + 4)))
            epi.append(Item(Ins(f"s_add_u32 s{sSt}, s{sSt}, {8192 if rt < 2 else 10*8192}"), e0, es + 20))
    P += schedule(M, sync, [tighten(reads), tighten(dma), tighten(epi)], name="p3", verbose=True)

def reduce_units(P, nu):
    a = 10
    LB = 64
    for k in range(nu):
        L(P, f"s_add_u32 s{sTmp}, s{sU}, {32*k}\ns_lshl_b32 s{sTmp}, s{sTmp}, 13")
        for src in range(8):
            if src == 4: L(P, f"s_add_u32 s{sTmp}, s{sTmp}, 4096")
            P.append(Ins(f"buffer_load_dwordx4 {vr(LB + (k*8+src)*4)}, v{vL16}, {srd(sWs)}, s{sTmp} offen offset:{(src&3)*1024} sc1", tag=f"u{nu}{k}s{src}"))
    L(P, f"""
v_and_b32 v{a}, 15, v0
v_mul_u32_u24 v{a}, 896, v{a}
v_bfe_u32 v{a+1}, v0, 4, 1
v_lshl_add_u32 v{a}, v{a+1}, 5, v{a}
v_lshrrev_b32 v{a+1}, 5, v0
v_lshl_add_u32 v{a}, v{a+1}, 4, v{a}
s_mov_b32 s{sU+3}, 0xffff0000
""")
    for k in range(nu):
        L(P, f"""
s_add_u32 s{sTmp}, s{sU}, {32*k}
s_mul_i32 s{sU+1}, s{sTmp}, 43
s_lshr_b32 s{sU+1}, s{sU+1}, 9
s_mul_i32 s{sU+2}, s{sU+1}, 12
s_sub_u32 s{sTmp}, s{sTmp}, s{sU+2}
s_add_u32 s{sU+1}, s{sU+1}, s{sRot}
s_sub_u32 s{sU+2}, s{sU+1}, 7
s_cselect_b32 s{sU+1}, s{sU+1}, s{sU+2}
s_lshl_b32 s{sU+1}, s{sU+1}, 7
s_mul_i32 s{sU+2}, s{sTmp}, 11
s_lshr_b32 s{sU+2}, s{sU+2}, 5
s_mul_i32 s{sTmp2}, s{sU+2}, 3
s_sub_u32 s{sTmp}, s{sTmp}, s{sTmp2}
s_mul_i32 s{sTmp}, s{sTmp}, {16*896}
s_add_u32 s{sU+1}, s{sU+1}, s{sTmp}
s_and_b32 s{sTmp}, s{sU+2}, 1
s_lshl_b32 s{sTmp}, s{sTmp}, 6
s_add_u32 s{sU+1}, s{sU+1}, s{sTmp}
s_lshr_b32 s{sTmp}, s{sU+2}, 1
s_mul_i32 s{sTmp}, s{sTmp}, {48*896}
s_add_u32 s{sU+1}, s{sU+1}, s{sTmp}
""")
        A = 16
        for src in range(8):
            P.append(W(vm=f"u{nu}{k}s{src}"))
            b = LB + (k * 8 + src) * 4
            for r in range(4):
                if src == 0:
                    L(P, f"v_lshlrev_b32 v{A+2*r}, 16, v{b+r}\nv_and_b32 v{A+2*r+1}, s{sU+3}, v{b+r}")
                else:
                    L(P, f"v_lshlrev_b32 v{A+8}, 16, v{b+r}\nv_and_b32 v{A+9}, s{sU+3}, v{b+r}\n"
                         f"v_pk_add_f32 {vr(A+2*r,2)}, {vr(A+2*r,2)}, {vr(A+8,2)}")
        D = 32 + 4 * k
        for r in range(4): L(P, f"v_cvt_pk_bf16_f32 v{D+r}, v{A+2*r}, v{A+2*r+1}")
        L(P, f"s_nop 1\nv_permlane16_swap_b32 v{D}, v{D+2}\nv_permlane16_swap_b32 v{D+1}, v{D+3}")
        L(P, f"buffer_store_dwordx4 {vr(D)}, v{a}, {srd(sOut)}, s{sU+1} offen")

def final(P):
    a = 10
    L(P, f"""
s_waitcnt vmcnt(0)
s_barrier
s_cmp_lg_u32 s3, 0
s_cbranch_scc1 L_nopoll
s_lshl_b32 s{sTmp}, s{sB}, 3
v_mov_b32 v{a}, s{sTmp}
v_mov_b32 v{a+1}, 1
s_mov_b64 exec, 1
buffer_atomic_add v{a+1}, v{a}, {srd(sDbg)}, 0 offen sc1
L_poll:
buffer_load_dword v{a+1}, v{a}, {srd(sDbg)}, 0 offen sc1
s_waitcnt vmcnt(0)
v_readfirstlane_b32 s{sTmp}, v{a+1}
s_nop 1
s_cmp_ge_u32 s{sTmp}, 8
s_cbranch_scc1 L_polled
s_sleep 2
s_branch L_poll
L_polled:
s_mov_b64 exec, -1
L_nopoll:
s_barrier
""")
    stamp(P)
    L(P, f"s_lshl_b32 s{sU}, s{sH}, 2\ns_add_u32 s{sU}, s{sU}, s3\ns_cmp_ge_u32 s{sU}, 20\ns_cbranch_scc1 L_two")
    reduce_units(P, 3)
    L(P, "s_branch L_fin\nL_two:")
    reduce_units(P, 2)
    L(P, "L_fin:")
    if OPT["stamps"]:
        G.last = True
        stamp(P)
        ns = G.nstamp
        L(P, f"""
s_waitcnt vmcnt(0)
s_cmp_lg_u32 s3, 0
s_cbranch_scc1 L_end
s_mov_b32 s{sWs}, s18
s_and_b32 s{sWs+1}, s19, 0xffff
s_mov_b32 s{sWs+2}, 0x10000000
s_mul_i32 s{sTmp}, s2, {ns*16}
s_add_u32 s{sTmp}, s{sTmp}, 0x8000000
v_mov_b32 v{a}, s{sTmp}
s_mov_b64 exec, 1
v_mov_b32 v17, 0
v_mov_b32 v19, 0
""")
        for j in range(ns):
            L(P, f"v_mov_b32 v16, s{STAMPS[j]}\nv_mov_b32 v18, s{STAMPS[j]+1}\n"
                 f"buffer_store_dwordx4 v[16:19], v{a}, {srd(sWs)}, 0 offen offset:{16*j}\ns_nop 1")

def main():
    out = None; rare = []; errs = []
    nvar = OPT["nvar"]
    for var in range(nvar):
        G.var = var; G.nstamp = 0
        P = []
        prologue(P)
        npro = len(P)
        phase1_and_qk0(P)
        stamp(P)
        init_path(P)
        marks = []
        for j in range(16):
            marks.append(len(P))
            iteration(P, j)
            if j & 1 == 0 and 2 <= j <= 14:
                L(P, f"s_cmp_lt_u32 s{sKo}, {(20 if OPT['early'] else 19)*16384}\ns_cbranch_scc1 L_loop_{var}")
        stamp(P)
        transition(P)
        stamp(P)
        phase3(P)
        stamp(P)
        resolve_waits(P)
        errs += check(P, f"main{var}")
        body = [i.txt for i in P[marks[1]:marks[3]]]
        for j in range(3, 15, 2):
            assert [i.txt for i in P[marks[j]:marks[j+2]]] == body, f"iteration pair {j} differs"
        if var == 0:
            out = P[:npro]
            if nvar > 1: L(out, f"s_cmp_eq_u32 s{sU}, 1\ns_cbranch_scc1 L_var_1")
        else:
            out += [Ins(".p2align 6"), Ins(f"L_var_{var}:")]
        out += P[npro:marks[1]] + [Ins(".p2align 6"), Ins(f"L_loop_{var}:")] + P[marks[1]:marks[3]] + P[marks[15]:]
        if var < nvar - 1: L(out, "s_branch L_final")
        R = []
        rare_path(R, f"i0_{var}", 1); rare_path(R, f"A_{var}", 0); rare_path(R, f"B_{var}", 1)
        errs += check(R, "rare")
        rare += R
    F = []
    final(F)
    resolve_waits(F)
    errs += check(F, "final")
    out += [Ins("L_final:")] + F
    for e in errs[:30]: print("HAZARD", e, file=sys.stderr)
    txt = f"""; fused GQA block: Q projection, attention, output projection, cross-workgroup reduce
; @launch grid=(256,1,1) block=(256,1,1) lds=163840
.amdgcn_target "amdgcn-amd-amdhsa--gfx950"
.text
.globl {KN}
.p2align 8
.type {KN},@function
{KN}:
"""
    txt += "\n".join(i.txt for i in out)
    txt += "\nL_end:\ns_endpgm\n"
    txt += "\n".join(i.txt for i in rare)
    txt += f"""
s_endpgm
.section .rodata,"a"
.p2align 6
.amdhsa_kernel {KN}
  .amdhsa_next_free_vgpr 512
  .amdhsa_next_free_sgpr 102
  .amdhsa_accum_offset 256
  .amdhsa_group_segment_fixed_size 0
  .amdhsa_kernarg_size 64
  .amdhsa_user_sgpr_count 2
  .amdhsa_user_sgpr_kernarg_segment_ptr 1
  .amdhsa_system_sgpr_workgroup_id_x 1
  .amdhsa_float_denorm_mode_32 3
.end_amdhsa_kernel
"""
    open(sys.argv[1], "w").write(txt)
    print("instructions:", len(out), "stamps:", G.nstamp, "hazards:", len(errs), file=sys.stderr)

main()
```

```python
import sys, math, struct
from asmlib import *

KN = "standalone__gqa_block_cached__near_ridge_kernel"
OPT = dict(stamps=False, nt_kv=True, nt_x=False, nt_w=False, pretouch=True, nostore=False, p1st=False,
           map2=True, nvar=2, stag=2, dsp=5, dst=-11, kv0=12, kvper=2, xlead=4, early=True, zero='', dbgst=False)
for a in sys.argv[2:]:
    k, v = a.split("=")
    assert k in OPT, k
    OPT[k] = type(OPT[k])(int(v)) if not isinstance(OPT[k], str) else v
DSP = OPT["dsp"]; DST = OPT["dst"]

def f2u(f): return struct.unpack("<I", struct.pack("<f", f))[0]
CSCALE = math.log2(math.e) / 16.0
THRESH = 8.0
KS = 16896
VB = 4 * KS
WQB = 3 * KS
OXB = 65536
XU = [0, 12288, 24576, 36864, 118272, 130560, 142848]
NT_KV = " nt" if OPT["nt_kv"] else ""
NT_X = " nt" if OPT["nt_x"] else ""
NT_W = " nt" if OPT["nt_w"] else ""

sX, sK, sV, sWq, sWo, sWs, sDbg, sOut = 20, 24, 28, 32, 36, 40, 44, 48
sB, sH, sRot, sC, sT, sKVm, sWqm, sWom = 52, 53, 54, 55, 56, 57, 58, 59
sWqOff = 60
sTmp, sKo, sVo = 67, 68, 69
sKx, sVx, sM0V, sRd = 70, 72, 74, 75
sCg, sTmp2, sSt, sWoW = 76, 77, 78, 79
sU = 80
sXOff, sXm = 84, 91
STAMPS = [96, 98, 100, 4, 6, 8, 12, 14, 16]
def srd(d): return f"s[{d}:{d+3}]"
vK, vV, vK0, vV0 = 1, 2, 3, 4
vD = 5
vMx = 9
vA = 10
vL16 = 14
vT = 15
SB = [16, 40]
NEGM = 64
SPARE = 76
OB = 88
ACC1 = [16, 64, 112, 64]
FR1 = 160
vW = 224
vXo = 228
vXr = 232
DUMMY = 236
aQ = 0
aL, aOnes = 108, 120
aFR = 128
aO7 = 192
aX = 88
def vr(b, n=4): return f"v[{b}:{b+n-1}]"
def ar(b, n=4): return f"a[{b}:{b+n-1}]"
def Qf(rt, ds): return ar(aQ + 4 * (ds * 3 + rt))
def Xf(slot, rt): return ar(aX + 4 * (slot * 3 + rt))
def Oacc(dt, rt):
    ks = dt >> 1
    if ks < 7: return vr(OB + (ks * 3 + rt) * 8 + (dt & 1) * 4)
    return ar(aO7 + rt * 8 + (dt & 1) * 4)
def Sreg(buf, rt, T): return SB[buf] + rt * 8 + T * 4
MF = "v_mfma_f32_16x16x32_bf16"

class G: var = 0; nstamp = 0; last = False
def stamp(P, fine=False):
    if not OPT["stamps"]: return
    if OPT["p1st"] and not fine and G.nstamp > 0 and not G.last: return
    j = G.nstamp; G.nstamp += 1
    P += [Ins("s_memrealtime s[92:93]"), Ins("s_memtime s[94:95]"), Ins("s_waitcnt lgkmcnt(0)"),
          Ins(f"s_mov_b32 s{STAMPS[j]}, s92"), Ins(f"s_mov_b32 s{STAMPS[j]+1}, s94")]

def L(P, s):
    for line in s.strip().split("\n"):
        line = line.strip()
        if line: P.append(Ins(line))

def spaced(lst, items, e0, dmax, sp=None, lo=0):
    sp = sp or DSP
    k = 0
    for x in items:
        e = min(e0 + int(sp * k), dmax)
        if x[0].kind == "vmem":
            lst.append(Item(x, e, min(e + 1, dmax))); k += 1
        else:
            lst.append(Item(x, lo, max(e - 1, -1)))

def inline(P, grp):
    for x in grp:
        P += x
        if " m0," in x[-1].txt: P.append(Ins("s_nop 0"))

def wq_dma(s):
    r = []
    if s < 14:
        so = sWqOff + (s >> 1)
        if s & 1:
            r.append([Ins(f"s_add_u32 s{sTmp2}, s{so}, 262144")]); so = sTmp2
    else:
        so = sWqOff + (s - 14) % 7
        if (s - 14) % 7 == 0:
            r.append([Ins(f"s_xor_b32 s{sTmp}, s{sRd}, {2 + (s - 14) // 7}")])
            r.append([Ins(f"s_lshl_b32 s{sTmp}, s{sTmp}, 7")])
            r.append([Ins(f"s_lshl_b32 s{sTmp2}, s{sU+1}, 18")])
            r.append([Ins(f"s_add_u32 s{sTmp}, s{sTmp}, s{sTmp2}")])
            r.append([Ins(f"s_add_u32 s{sWq}, s10, s{sTmp}"), Ins(f"s_addc_u32 s{sWq+1}, s11, 0")])
    r.append([Ins(f"s_add_u32 m0, s{sWqm}, {(s % 4) * 16384}")])
    for ch in range(4):
        r.append([Ins(f"buffer_load_dwordx4 v{vW+ch}, {srd(sWq)}, s{so} offen offset:{ch*1024}{NT_W} lds", cost=2, tag=f"wq{s}")])
    return r

def x_dma(u, which=(0, 1, 2)):
    r = [[Ins(f"s_add_u32 m0, s{sXm}, {XU[u]}")]]
    for i in which:
        r.append([Ins(f"buffer_load_dwordx4 v{vXo+i}, {srd(sX)}, s{sXOff+u} offen offset:{i*1024}{NT_X} lds", cost=2, tag=f"x{u}")])
    return r

def kv_group(isK, m0txt, tag, ks=(0, 1, 2, 3)):
    s, o = (sK, sKo) if isK else (sV, sVo)
    r = [[Ins(m0txt)]]
    for k in ks:
        r.append([Ins(f"buffer_load_dwordx4 v{vD+k}, {srd(s)}, s{o} offen offset:{k*1056}{NT_KV} lds", cost=2, tag=tag)])
    if 3 in ks: r.append([Ins(f"s_add_u32 s{o}, s{o}, 16384")])
    return r

def wo_dma(sg):
    i = sg & 3
    r = []
    if i == 0 and sg > 0:
        r.append([Ins(f"s_add_u32 s{sCg}, s{sCg}, 128")])
        r.append([Ins(f"s_sub_u32 s{sTmp2}, s{sCg}, s{sWoW}")])
        r.append([Ins(f"s_cmp_eq_u32 s{sTmp2}, 896"), Ins(f"s_cselect_b32 s{sCg}, s{sWoW}, s{sCg}")])
    r.append([Ins(f"s_add_u32 s{sTmp2}, s{sCg}, s{sWqOff+i}")])
    r.append([Ins(f"s_add_u32 m0, s{sWom}, {i*16384}")])
    for ch in range(4):
        r.append([Ins(f"buffer_load_dwordx4 v{vD+ch}, {srd(sWo)}, s{sTmp2} offen offset:{ch*1024}{NT_W} lds", cost=2, tag=f"wo{sg}")])
    return r

def mksrd(d, base, add, size, neg=None):
    if {sK: "k", sV: "k", sWq: "q", sX: "x", sWo: "o"}.get(d, "-") in OPT["zero"]: size = 0
    t = f"s_add_u32 s{d}, s{base}, {add}\ns_addc_u32 s{d+1}, s{base+1}, {neg or 0}\ns_and_b32 s{d+1}, s{d+1}, 0xffff\n"
    return t + f"s_mov_b32 s{d+2}, {size}\ns_mov_b32 s{d+3}, 0x20000\n"

def prologue(P):
    L(P, "s_cmp_ge_u32 s2, 256\ns_cbranch_scc1 L_end\ns_load_dwordx16 s[4:19], s[0:1], 0")
    L(P, f"v_lshrrev_b32 v{vT}, 6, v0\nv_and_b32 v0, 63, v0")
    if OPT["map2"]:
        L(P, f"""s_lshr_b32 s{sB}, s2, 4
v_readfirstlane_b32 s3, v{vT}
s_lshl_b32 s{sTmp}, s2, 2
s_and_b32 s{sTmp}, s{sTmp}, 16
s_add_u32 s{sB}, s{sB}, s{sTmp}
s_and_b32 s{sH}, s2, 3
s_lshl_b32 s{sH}, s{sH}, 1
s_bfe_u32 s{sTmp}, s2, 0x10003
s_add_u32 s{sH}, s{sH}, s{sTmp}""")
    else:
        L(P, f"s_lshr_b32 s{sB}, s2, 3\nv_readfirstlane_b32 s3, v{vT}\ns_and_b32 s{sH}, s2, 7")
    a, b, c = DUMMY, DUMMY + 1, DUMMY + 2
    L(P, f"""
s_mul_i32 s{sTmp}, s{sB}, 37
s_lshr_b32 s{sTmp}, s{sTmp}, 8
s_mul_i32 s{sTmp}, s{sTmp}, 7
s_sub_u32 s{sRot}, s{sB}, s{sTmp}
s_and_b32 s{sRd}, s{sB}, 3
v_lshlrev_b32 v{vL16}, 4, v0
v_lshrrev_b32 v{a}, 1, v0
v_lshrrev_b32 v{b}, 4, v0
v_xor_b32 v{a}, v{a}, v{b}
v_and_b32 v{a}, 3, v{a}
v_lshrrev_b32 v{b}, 1, v{a}
v_lshlrev_b32 v{b}, 2, v{b}
v_and_b32 v{c}, 1, v{a}
v_or_b32 v{b}, v{b}, v{c}
v_and_b32 v{c}, 1, v0
v_lshl_or_b32 v{b}, v{c}, 1, v{b}
v_lshlrev_b32 v{b}, 4, v{b}
v_bfe_u32 v{c}, v0, 3, 2
v_lshl_add_u32 v{b}, v{c}, 13, v{b}
v_lshrrev_b32 v{c}, 5, v0
v_lshl_add_u32 v{vW}, v{c}, 16, v{b}
v_add_u32 v{vW+1}, {4*8192-1024}, v{vW}
v_add_u32 v{vW+2}, {16*8192-2048}, v{vW}
v_add_u32 v{vW+3}, {20*8192-3072}, v{vW}
s_and_b32 s{sU}, s3, 1
s_lshr_b32 s{sU+1}, s3, 1
s_lshl_b32 s{sU+2}, s{sU}, 9
s_lshl_b32 s{sWqm}, s3, 12
s_add_u32 s{sWqm}, s{sWqm}, {WQB}
s_mul_i32 s{sXm}, s3, 3072
s_mul_i32 s{sTmp}, s3, 24
v_lshrrev_b32 v{a}, 3, v0
v_add_u32 v{a}, s{sTmp}, v{a}
v_and_b32 v{c}, 7, v0
""")
    for i in range(3):
        L(P, f"""
v_bfe_u32 v{b}, v{a}, 1, 3
v_xor_b32 v{b}, v{b}, v{c}
v_lshlrev_b32 v{b}, 4, v{b}
v_mul_u32_u24 v{vXo+i}, 896, v{a}
v_add_u32 v{vXo+i}, v{vXo+i}, v{b}
""")
        if i: L(P, f"v_subrev_u32 v{vXo+i}, {1024*i}, v{vXo+i}")
        if i < 2: L(P, f"v_add_u32 v{a}, 8, v{a}")
    L(P, f"s_mov_b32 s{sCg}, s{sRot}")
    def koff(st):
        L(P, f"""
s_lshl_b32 s{sTmp}, s{sCg}, 19
s_add_u32 s{sWqOff+st}, s{sTmp}, s{sU+2}
s_lshl_b32 s{sXOff+st}, s{sCg}, 7
s_add_u32 s{sCg}, s{sCg}, 1
s_cmp_eq_u32 s{sCg}, 7
s_cselect_b32 s{sCg}, 0, s{sCg}
""")
    koff(0); koff(1)
    L(P, f"""
s_lshl_b32 s{sTmp}, s{sH}, 10
s_xor_b32 s{sTmp2}, s{sRd}, s{sU+1}
s_lshl_b32 s{sTmp2}, s{sTmp2}, 7
s_mul_i32 s{sSt}, s{sB}, 86016
s_waitcnt lgkmcnt(0)
""")
    stamp(P)
    L(P, f"s_add_u32 s10, s10, s{sTmp}\ns_addc_u32 s11, s11, 0\ns_and_b32 s11, s11, 0xffff")
    L(P, mksrd(sWq, 10, f"s{sTmp2}", 447 * 8192 + 640))
    inline(P, wq_dma(0))
    L(P, mksrd(sX, 4, f"s{sSt}", 86016))
    inline(P, x_dma(0) + wq_dma(1) + wq_dma(2) + x_dma(1))
    if OPT["pretouch"]:
        n = 16 if OPT["map2"] else 32
        rows = 448 // n
        L(P, f"""
s_and_b32 s{sTmp}, s{sB}, {n-1}
s_mul_i32 s{sTmp}, s{sTmp}, {rows}
s_lshl_b32 s{sTmp2}, s3, 3
s_add_u32 s{sTmp2}, s{sTmp2}, s{sTmp}
s_add_u32 s{sTmp}, s{sTmp}, {rows-1}
v_lshrrev_b32 v{a}, 3, v0
v_add_u32 v{a}, s{sTmp2}, v{a}
v_min_u32 v{a}, s{sTmp}, v{a}
v_lshlrev_b32 v{a}, 13, v{a}
v_and_b32 v{b}, 7, v0
v_lshl_add_u32 v{a}, v{b}, 7, v{a}
""")
        L(P, mksrd(sOut, 10, 0, 447 * 8192 + 1024))
        P.append(Ins(f"buffer_load_dword v{DUMMY+4}, v{a}, {srd(sOut)}, 0 offen"))
    for st in range(2, 7): koff(st)
    a, b, c = DUMMY + 8, DUMMY + 9, DUMMY + 10
    L(P, f"""
s_lshl_b32 s{sTmp}, s{sB}, 3
s_add_u32 s{sTmp}, s{sTmp}, s{sH}
s_lshl_b32 s{sTmp}, s{sTmp}, 18
s_sub_u32 s{sTmp}, s{sTmp}, 96
s_cselect_b32 s{sTmp2}, -1, 0
""")
    L(P, mksrd(sK, 6, f"s{sTmp}", 262144 + 96, f"s{sTmp2}") + mksrd(sV, 8, f"s{sTmp}", 262144 + 96, f"s{sTmp2}"))
    L(P, f"s_mul_i32 s{sTmp}, s{sH}, 458752\n" + mksrd(sWo, 12, f"s{sTmp}", 458752))
    L(P, f"s_mul_i32 s{sTmp}, s{sB}, 688128\n" + mksrd(sWs, 18, f"s{sTmp}", 688128))
    L(P, mksrd(sOut, 14, f"s{sSt}", 86016) + mksrd(sDbg, 16, 0, 256))
    L(P, f"""
s_mov_b32 s{sC}, {hex(f2u(CSCALE))}
s_mov_b32 s{sT}, {hex(f2u(THRESH))}
s_mul_i32 s{sKVm}, s3, 4224
s_lshl_b32 s{sKo}, s3, 12
s_mov_b32 s{sVo}, s{sKo}
s_mov_b32 s{sKx}, 0
s_mov_b32 s{sKx+1}, {KS}
s_mov_b32 s{sVx}, {VB+3*KS}
s_mov_b32 s{sVx+1}, {VB+2*KS}
s_add_u32 s{sM0V}, s{sKVm}, {VB+KS}
s_lshl_b32 s{sWom}, s{sU}, 13
s_lshl_b32 s{sTmp}, s{sU+1}, 12
s_add_u32 s{sWom}, s{sWom}, s{sTmp}
s_mul_i32 s{sWoW}, s{sU}, {256*896}
s_mul_i32 s{sTmp}, s{sU+1}, {32*896}
s_add_u32 s{sWoW}, s{sWoW}, s{sTmp}
s_lshl_b32 s{sTmp}, s{sRd}, 7
v_xor_b32 v{vD+3}, s{sTmp}, v{vL16}
v_add_u32 v{vD}, 96, v{vD+3}
v_add_u32 v{vD+1}, 64, v{vD+3}
v_add_u32 v{vD+2}, 32, v{vD+3}
v_and_b32 v{a}, 7, v0
v_mul_u32_u24 v{a}, 1056, v{a}
v_bfe_u32 v{b}, v0, 3, 1
v_lshl_add_u32 v{a}, v{b}, 9, v{a}
v_lshrrev_b32 v{b}, 4, v0
v_lshl_add_u32 v{vK0}, v{b}, 4, v{a}
v_mov_b32 v{vK}, v{vK0}
v_bfe_u32 v{a}, v0, 2, 3
v_mul_u32_u24 v{b}, 1056, v{a}
v_lshrrev_b32 v{c}, 5, v0
v_lshl_add_u32 v{b}, v{c}, 9, v{b}
v_and_b32 v{c}, 3, v0
v_lshl_add_u32 v{vV0}, v{c}, 3, v{b}
v_add_u32 v{vV}, {VB+3*KS}, v{vV0}
v_lshlrev_b32 v{b}, 7, v{a}
v_lshl_add_u32 v{b}, v{c}, 3, v{b}
v_lshrrev_b32 v{c}, 5, v0
v_lshl_add_u32 v{b}, v{c}, 11, v{b}
s_lshl_b32 s{sTmp}, s{sU}, 12
s_add_u32 s{sTmp}, s{sTmp}, {WQB}
v_add_u32 v{b}, s{sTmp}, v{b}
v_lshrrev_b32 v{a}, 1, v{a}
""")
    for t in range(4):
        L(P, f"v_xor_b32 v{c}, {t}, v{a}\nv_lshl_add_u32 v{vA+t}, v{c}, 5, v{b}")
    L(P, f"""
v_and_b32 v{a}, 15, v0
v_lshlrev_b32 v{b}, 7, v{a}
s_mul_i32 s{sTmp}, s{sU+1}, 6144
v_add_u32 v{b}, s{sTmp}, v{b}
v_lshrrev_b32 v{a}, 1, v{a}
v_lshrrev_b32 v{c}, 4, v0
v_xor_b32 v{a}, v{a}, v{c}
v_lshl_add_u32 v{vXr}, v{a}, 4, v{b}
v_xor_b32 v{a}, 4, v{a}
v_lshl_add_u32 v{vXr+1}, v{a}, 4, v{b}
""")

def q_epilogue(dg, win, sA, sB_, sC_):
    base = ACC1[dg]
    u = 0
    for e in range(2):
        for rt in range(3):
            e0, d0 = win(u); u += 1
            A = base + ((2 * e) * 3 + rt) * 4; B = base + ((2 * e + 1) * 3 + rt) * 4
            for k in range(4): sA.append(Item(Ins(f"v_mul_f32 v{A+k}, s{sC}, v{A+k}"), e0, d0 - 4))
            for k in range(4): sA.append(Item(Ins(f"v_mul_f32 v{B+k}, s{sC}, v{B+k}"), e0, d0 - 4))
            cv = [Item(Ins(x), e0, d0 - 3) for x in (
                  f"v_cvt_pk_bf16_f32 v{A}, v{A}, v{A+1}", f"v_cvt_pk_bf16_f32 v{B}, v{B}, v{B+1}",
                  f"v_cvt_pk_bf16_f32 v{A+1}, v{A+2}, v{A+3}", f"v_cvt_pk_bf16_f32 v{B+1}, v{B+2}, v{B+3}")]
            sA += cv
            sw = [Item(Ins(f"v_permlane16_swap_b32 v{A}, v{B}", cost=2), e0, d0 - 1, deps=cv, lag=2),
                  Item(Ins(f"v_permlane16_swap_b32 v{A+1}, v{B+1}", cost=2), e0, d0 - 1, deps=cv, lag=2)]
            sB_ += sw
            q = aQ + 4 * ((2 * dg + e) * 3 + rt)
            for dst, src, dep in ((q, A, 0), (q + 2, B, 0), (q + 1, A + 1, 1), (q + 3, B + 1, 1)):
                sC_.append(Item(Ins(f"v_accvgpr_write_b32 a{dst}, v{src}"), e0, d0, deps=[sw[dep]]))

def kread(fi, ds, T):
    return Ins(f"ds_read_b128 {ar(aFR + 4*(fi % 16))}, v{vK} offset:{T*8448 + ds*64}", tag=f"f{fi}")
def vread(fi, dt):
    b = aFR + 4 * (fi % 16)
    return [Ins(f"ds_read_b64_tr_b16 {ar(b,2)}, v{vV} offset:{dt*32}", tag=f"f{fi}x"),
            Ins(f"ds_read_b64_tr_b16 {ar(b+2,2)}, v{vV} offset:{8448 + dt*32}", tag=f"f{fi}")]

def rdl(s, f):
    if s == 0: return -1 if f < 4 else 2 * f - 6
    return 24 * s + min(3 * (f & 6) - 7 + (2 if f >= 2 else 0), 7)

def phase1_and_qk0(P):
    SG = OPT["stag"] * G.var
    M = []
    for s in range(28):
        for f in range(8):
            hi, t = f >> 2, f & 3
            if s < 14: dg, slot, first = hi, s, s == 0
            else: dg, slot, first = 2 + (s - 14) // 7, 2 * ((s - 14) % 7) + hi, ((s - 14) % 7 == 0 and hi == 0)
            F = 8 * s + f
            for rt in range(3):
                acc = vr(ACC1[dg] + (t * 3 + rt) * 4)
                M.append(Ins(f"{MF} {acc}, {vr(FR1 + 4*(F % 16))}, {Xf(slot, rt)}, {'0' if first else acc}"))
    n1 = len(M)
    for ds in range(8):
        for T in range(2):
            fi = ds * 2 + T
            for rt in range(3):
                acc = vr(Sreg(0, rt, T))
                M.append(Ins(f"{MF} {acc}, {ar(aFR + 4*(fi % 16))}, {Qf(rt, ds)}, {'0' if ds == 0 else acc}"))
    sync, reads, dma, epi, epi2, epi3, misc = [], [], [], [], [], [], []
    tiles = [(True, 0, "K0"), (True, KS, "K1"), (True, 2 * KS, "K2"), (False, VB + 3 * KS, "V0"), (False, VB + 4 * KS, "V1")]
    kvplan = {}
    per = OPT["kvper"]
    for i in range(0, 20, per): kvplan[OPT["kv0"] + i // per] = tiles[i // 4] + (list(range(i % 4, i % 4 + per)),)
    assert OPT["kv0"] + 12 // per >= 14 and max(kvplan) < 26
    kvplan[26] = (True, 3 * KS, "K3", [0, 1, 2, 3]); kvplan[27] = (False, VB, "V2", [0, 1, 2, 3])
    xplan = {}
    for u in range(2, 7):
        s0 = max(2 * u - OPT["xlead"], 0)
        xplan.setdefault(s0, []).append((u, (0, 1))); xplan.setdefault(s0 + 1, []).append((u, (2,)))
    for s in range(29):
        g0 = max(24 * s - 13, -1)
        if s < 28:
            tg = [f"wq{s}"] + ([f"x{s//2}"] if (s < 14 and s % 2 == 0) else [])
            w = W(vm=tg, lg=0 if s > 0 else None)
        else:
            w = W(vm=["V0", "K1"], lg=0)
        xs = []
        if OPT["p1st"] and s in (0, 4, 14, 21, 28): stamp(xs, True)
        sync.append(Item([w, Ins("s_barrier")] + xs, g0, g0))
        if s < 28:
            def xrd(slot, d):
                u = slot >> 1
                for rt in range(3):
                    off = (XU[u] if u < 4 else XU[u] - XU[4]) + rt * 2048
                    reads.append(Item(Ins(f"ds_read_b128 {Xf(slot, rt)}, v{vXr + (slot & 1)} offset:{off}", tag=f"xr{slot}"), g0, d))
            if s == 0: xrd(0, -1)
            for f in range(8):
                hi, t = f >> 2, f & 3
                F = 8 * s + f
                b = FR1 + 4 * (F % 16)
                off = (s % 4) * 16384 + hi * 8192
                reads.append(Item(Ins(f"ds_read_b64_tr_b16 {vr(b,2)}, v{vA+t} offset:{off}", tag=f"w{F}x"), g0, rdl(s, f)))
                reads.append(Item(Ins(f"ds_read_b64_tr_b16 {vr(b+2,2)}, v{vA+t} offset:{off+1024}", tag=f"w{F}"), g0, rdl(s, f)))
                if f == 1 and 0 < s < 14: xrd(s, 24 * s - 5)
            if s == 7:
                for k in range(2): reads.append(Item(Ins(f"v_add_u32 v{vXr+k}, {XU[4]}, v{vXr+k}"), g0, 24 * s + 10))
            t0 = f"xr{s}" if 0 < s < 14 else f"w{8*s+1}"
            sync.append(Item(W(lg=t0), 24 * s - 1, 24 * s - 1))
            sync.append(Item(W(lg=f"w{8*s+3}"), 24 * s + 5, 24 * s + 5))
        else:
            for fi in range(16):
                first = n1 + 3 * fi
                reads.append(Item(kread(fi, fi >> 1, fi & 1), max(first - 15, g0 + 1), first - (first - n1) % 6 - 6))
            for i in range(8):
                sync.append(Item(W(lg=f"f{2*i+1}"), n1 + 6 * i - 1, n1 + 6 * i - 1))
        grp = []
        if s + 3 < 28: grp += wq_dma(s + 3)
        for (u, wh) in xplan.get(s, []): grp += x_dma(u, wh)
        if s in kvplan:
            isK, off, tag, ks = kvplan[s]
            grp += kv_group(isK, f"s_add_u32 m0, s{sKVm}, {off}", tag, ks)
        nv = sum(1 for x in grp if x[0].kind == "vmem")
        if s == 0: spaced(dma, grp, SG, 10, 2, lo=-1)
        elif nv: spaced(dma, grp, 24 * s - 12 + SG, 24 * s + 11, min(DSP, 24 / nv))
    wins = {1: (336 + 6, 16, 50), 0: (336 + 6 + 96, 20, 60), 2: (504 + 60, 16, 40)}
    for dg in (1, 0, 2, 3):
        if dg < 3:
            e0, st, ln = wins[dg]
            lim = {1: 500, 0: n1 - 4, 2: n1 + 20}[dg]
            win = lambda u: (e0 + u * st, min(e0 + u * st + ln, lim))
        else: win = lambda u: (n1 + 2 + (0 if u < 3 else 3), n1 + (33 if u < 3 else 39))
        q_epilogue(dg, win, epi, epi2, epi3)
    misc.append(Item(Ins(f"v_mov_b32 v{vT}, 0x3f803f80"), n1 + 10, n1 + 44))
    for k in range(4): misc.append(Item(Ins(f"v_accvgpr_write_b32 a{aOnes+k}, v{vT}"), n1 + 10, n1 + 45))
    misc.append(Item(Ins(f"v_add_u32 v{vK}, s{sKx+1}, v{vK0}"), n1 + 43, n1 + 45))
    P += schedule(M, sync, [tighten(reads), tighten(dma), tighten(epi2), tighten(epi3), tighten(epi), tighten(misc)], name="p1", verbose=True)

def crossmax(r, t):
    return [f"v_mov_b32 v{t}, v{r}", "s_nop 1", f"v_permlane32_swap_b32 v{r}, v{t}", f"v_max_f32 v{r}, v{r}, v{t}",
            f"v_mov_b32 v{t}, v{r}", "s_nop 1", f"v_permlane16_swap_b32 v{r}, v{t}", f"v_max_f32 v{r}, v{r}, v{t}"]

def init_path(P):
    for fi in range(4): P.append(kread(16 + fi, fi >> 1, fi & 1))
    if OPT["early"]:
        L(P, "s_barrier")
        inline(P, kv_group(True, f"s_mov_b32 m0, s{sKVm}", "Hm"))
    else: L(P, "s_nop 3")
    X = SPARE
    for rt in range(3):
        s = Sreg(0, rt, 0)
        L(P, f"v_max3_f32 v{X+rt}, v{s}, v{s+1}, v{s+2}\nv_max3_f32 v{X+rt}, v{X+rt}, v{s+3}, v{s+4}\n"
             f"v_max3_f32 v{X+rt}, v{X+rt}, v{s+5}, v{s+6}\nv_max_f32 v{X+rt}, v{X+rt}, v{s+7}")
    for sw in ("v_permlane32_swap_b32", "v_permlane16_swap_b32"):
        for rt in range(3): L(P, f"v_mov_b32 v{X+3+rt}, v{X+rt}")
        for rt in range(3): L(P, f"{sw} v{X+rt}, v{X+3+rt}")
        for rt in range(3): L(P, f"v_max_f32 v{X+rt}, v{X+rt}, v{X+3+rt}")
    for rt in range(3):
        for k in range(4): L(P, f"v_sub_f32 v{NEGM+4*rt+k}, 0, v{X+rt}")
    for rt in range(3):
        s = Sreg(0, rt, 0)
        for k in range(8): L(P, f"v_sub_f32 v{s+k}, v{s+k}, v{X+rt}")
        if rt == 0 and OPT["early"]: inline(P, kv_group(False, f"s_mov_b32 m0, s{sM0V}", "Hm"))
    if not OPT["early"]: L(P, "s_barrier")

def rare_path(R, site, buf):
    L(R, f"L_rare_{site}:\ns_nop 7\ns_nop 1")
    X = SPARE
    for rt in range(3):
        s = Sreg(buf, rt, 0)
        L(R, f"v_max3_f32 v{X}, v{s}, v{s+1}, v{s+2}\nv_max3_f32 v{X}, v{X}, v{s+3}, v{s+4}\n"
             f"v_max3_f32 v{X}, v{X}, v{s+5}, v{s+6}\nv_max3_f32 v{X}, v{X}, v{s+7}, 0")
        L(R, "\n".join(crossmax(X, X + 1)))
        for k in range(8): L(R, f"v_sub_f32 v{s+k}, v{s+k}, v{X}")
        for k in range(4): L(R, f"v_sub_f32 v{NEGM+4*rt+k}, v{NEGM+4*rt+k}, v{X}")
        L(R, f"v_sub_f32 v{X+1}, 0, v{X}\nv_exp_f32 v{X+1}, v{X+1}\ns_nop 0")
        for ks in range(7):
            for k in range(8): L(R, f"v_mul_f32 v{OB+(ks*3+rt)*8+k}, v{OB+(ks*3+rt)*8+k}, v{X+1}")
        for a in [aO7 + rt * 8 + k for k in range(8)] + [aL + 4 * rt + k for k in range(4)]:
            L(R, f"v_accvgpr_read_b32 v{X+2}, a{a}\nv_mul_f32 v{X+2}, v{X+2}, v{X+1}\nv_accvgpr_write_b32 a{a}, v{X+2}")
    L(R, f"s_nop 1\ns_branch L_ret_{site}")

def iteration(P, j):
    SG = OPT["stag"] * G.var
    p = j & 1
    last = (j == 15)
    site = ("i0" if j == 0 else ("A" if j & 1 else "B")) + f"_{G.var}"
    FK = 16 + 32 * j
    FV = FK + 16
    FN = FV + 16
    M = []
    if not last:
        for ds in range(8):
            for T in range(2):
                for rt in range(3):
                    acc = vr(Sreg(1 - p, rt, T))
                    c = vr(NEGM + 4 * rt) if ds == 0 else acc
                    M.append(Ins(f"{MF} {acc}, {ar(aFR + 4*((FK + 2*ds + T) % 16))}, {Qf(rt, ds)}, {c}"))
    nq = len(M)
    for rt in range(3):
        c = "0" if j == 0 else ar(aL + 4 * rt)
        M.append(Ins(f"{MF} {ar(aL+4*rt)}, {ar(aOnes)}, {vr(Sreg(p, rt, 0))}, {c}"))
    n0 = len(M)
    for dt in range(16):
        for rt in range(3):
            c = "0" if j == 0 else Oacc(dt, rt)
            M.append(Ins(f"{MF} {Oacc(dt, rt)}, {ar(aFR + 4*((FV + dt) % 16))}, {vr(Sreg(p, rt, 0))}, {c}"))
    n = len(M)
    sync, reads, soft, cvts, dma, ring, chk = [], [], [], [], [], [], []
    gbar = n - 11
    for rt in range(3):
        s = Sreg(p, rt, 0)
        dl = nq - 3 + rt if not last else -1
        ex = [Item(Ins(f"v_exp_f32 v{s+k}, v{s+k}", cost=2), -1 if last else 0, max(dl - 1, -1)) for k in range(8)]
        cv = [Item(Ins(f"v_cvt_pk_bf16_f32 v{s+k}, v{s+2*k}, v{s+2*k+1}"), -1 if last else 0, dl, deps=ex[2*k:2*k+2]) for k in range(4)]
        soft += ex; cvts += cv
    if last: cvts.append(Item(Ins("s_nop 1"), -1, -1))
    if not last:
        for fi in range(4, 16):
            first = 3 * fi
            reads.append(Item(kread(FK + fi, fi >> 1, fi & 1), max(first - 15, 0), first - first % 6 - 6))
        for i in range(8):
            sync.append(Item(W(lg=f"f{FK+2*i+1}"), 6 * i - 1, 6 * i - 1))
    for dt in range(16):
        first = n0 + 3 * dt
        wpos = first - (3 * dt) % 6 - 1
        for x in vread(FV + dt, dt): reads.append(Item(x, max(first - 16, -1), max(wpos - 5, -1)))
    for i in range(8):
        sync.append(Item(W(lg=f"f{FV+2*i+1}"), n0 + 6 * i - 1, n0 + 6 * i - 1))
    if not last:
        if OPT["early"]:
            gbar = nq + 1
            tgt = {0: ["V1", "K2"], 1: ["V2", "K3"], 2: "Hm"}.get(j, f"H{j-3}")
            sync.append(Item([W(vm=tgt), Ins("s_barrier")], gbar, gbar))
            for fi in range(4):
                reads.append(Item(kread(FN + fi, fi >> 1, fi & 1), n - 11, n - 6))
            d0 = gbar + 2 + SG
            spaced(dma, kv_group(True, f"s_add_u32 m0, s{sKx+1-p}, s{sKVm}", f"H{j}") + kv_group(False, f"s_add_u32 m0, s{sVx+1-p}, s{sKVm}", f"H{j}"),
                   d0, n - 2, 5, lo=nq - 6)
            e = nq
            ring.append(Item(Ins(f"s_add_u32 s{sTmp}, s{sKx+1-p}, {KS}"), e, n - 14))
            ring.append(Item([Ins(f"s_cmp_eq_u32 s{sTmp}, {4*KS}"), Ins(f"s_cselect_b32 s{sKx+p}, 0, s{sTmp}")], e, n - 13))
            ring.append(Item(Ins(f"v_add_u32 v{vK}, s{sKx+p}, v{vK0}"), e, n - 12))
            e = d0 + 5 * 4 + 1
            ring.append(Item(Ins(f"s_add_u32 s{sTmp}, s{sVx+p}, {KS}"), e, n - 2))
            ring.append(Item([Ins(f"s_cmp_eq_u32 s{sTmp}, {VB+5*KS}"), Ins(f"s_cselect_b32 s{sVx+1-p}, {VB}, s{sTmp}")], e, n - 2))
        else:
            tgt = {0: ["V1", "K2"], 1: "V2"}.get(j, f"G{j-2}")
            sync.append(Item([W(vm=tgt), Ins("s_barrier")], gbar, gbar))
            for fi in range(4):
                reads.append(Item(kread(FN + fi, fi >> 1, fi & 1), gbar + 1, n - 6))
            d = gbar - 1
            d0 = nq + SG
            spaced(dma, kv_group(True, f"s_add_u32 m0, s{sKx+p}, s{sKVm}", f"G{j}") + kv_group(False, f"s_mov_b32 m0, s{sM0V}", f"G{j}"),
                   d0, d, 5, lo=nq - 6)
            e = d0 + 2
            ring.append(Item(Ins(f"s_add_u32 s{sTmp}, s{sKx+1-p}, {KS}"), e, d))
            ring.append(Item([Ins(f"s_cmp_eq_u32 s{sTmp}, {4*KS}"), Ins(f"s_cselect_b32 s{sKx+p}, 0, s{sTmp}")], e, d))
            ring.append(Item(Ins(f"v_add_u32 v{vK}, s{sKx+p}, v{vK0}"), e, d))
            e = d0 + 5 * 4 + 1
            ring.append(Item(Ins(f"s_add_u32 s{sM0V}, s{sVx+1-p}, s{sKVm}"), e, n - 2))
            ring.append(Item(Ins(f"s_add_u32 s{sTmp}, s{sVx+p}, {KS}"), e, n - 2))
            ring.append(Item([Ins(f"s_cmp_eq_u32 s{sTmp}, {VB+5*KS}"), Ins(f"s_cselect_b32 s{sVx+1-p}, {VB}, s{sTmp}")], e, n - 2))
        vlast = n0 + 3 * 14 - 1 - 5
        ring.append(Item(Ins(f"v_add_u32 v{vV}, s{sVx+1-p}, v{vV0}"), vlast + 1, n - 1))
        s = SB[1 - p]
        e = nq + 6
        chk.append(Item(Ins(f"v_max3_f32 v{vMx}, v{s}, v{s+1}, v{s+2}"), e, n - 3))
        for k in range(3, 23, 2): chk.append(Item(Ins(f"v_max3_f32 v{vMx}, v{vMx}, v{s+k}, v{s+k+1}"), e, n - 3))
        chk.append(Item(Ins(f"v_max_f32 v{vMx}, v{vMx}, v{s+23}"), e, n - 3))
        chk.append(Item(Ins(f"v_cmp_lt_f32 vcc, s{sT}, v{vMx}"), e, n - 2))
    else:
        a, b, c = SPARE, SPARE + 1, SPARE + 2
        pre = f"""
v_lshrrev_b32 v{a}, 1, v0
v_lshrrev_b32 v{b}, 4, v0
v_xor_b32 v{a}, v{a}, v{b}
v_and_b32 v{a}, 3, v{a}
v_and_b32 v{c}, 1, v0
v_lshl_or_b32 v{a}, v{a}, 1, v{c}
v_lshrrev_b32 v{b}, 3, v0
v_mul_u32_u24 v{b}, 896, v{b}
v_lshl_add_u32 v{vD}, v{a}, 4, v{b}
v_add_u32 v{vD+1}, {8*896-1024}, v{vD}
v_add_u32 v{vD+2}, {16*896-2048}, v{vD}
v_add_u32 v{vD+3}, {24*896-3072}, v{vD}
"""
        pres = f"""
s_lshl_b32 s{sCg}, s{sRot}, 7
s_add_u32 s{sCg}, s{sCg}, s{sWoW}
s_mul_i32 s{sWqOff}, s{sRd}, {64*896}
s_xor_b32 s{sSt}, s{sRd}, 1
s_mul_i32 s{sWqOff+1}, s{sSt}, {64*896}
s_xor_b32 s{sSt}, s{sRd}, 2
s_mul_i32 s{sWqOff+2}, s{sSt}, {64*896}
s_xor_b32 s{sSt}, s{sRd}, 3
s_mul_i32 s{sWqOff+3}, s{sSt}, {64*896}
"""
        for x in pre.strip().split("\n"): ring.append(Item(Ins(x), 0, 10))
        for x in pres.strip().split("\n"): dma.append(Item(Ins(x), 0, 10))
        spaced(dma, wo_dma(0) + wo_dma(1) + wo_dma(2), 12 + G.var, n - 2, 3)
        rd = f"""
v_bfe_u32 v{a}, v0, 2, 3
v_lshlrev_b32 v{b}, 7, v{a}
v_and_b32 v{c}, 3, v0
v_lshl_add_u32 v{b}, v{c}, 3, v{b}
v_lshrrev_b32 v{c}, 5, v0
v_lshl_add_u32 v{b}, v{c}, 10, v{b}
v_lshrrev_b32 v{a}, 1, v{a}
s_lshl_b32 s{sTmp}, s{sU}, 1
v_xor_b32 v{a}, s{sTmp}, v{a}
v_xor_b32 v{c}, 1, v{a}
v_lshl_add_u32 v{a}, v{a}, 5, v{b}
v_lshl_add_u32 v{c}, v{c}, 5, v{b}
s_lshl_b32 s{sTmp}, s{sU}, 13
v_add_u32 v{vA}, s{sTmp}, v{a}
v_add_u32 v{vA+1}, s{sTmp}, v{c}
s_xor_b32 s{sTmp}, s{sTmp}, 8192
v_add_u32 v{vA+2}, s{sTmp}, v{a}
v_add_u32 v{vA+3}, s{sTmp}, v{c}
"""
        for x in rd.strip().split("\n"): ring.append(Item(Ins(x), 0, n - 1))
        for rt in range(3):
            chk.append(Item(Ins(f"v_accvgpr_read_b32 v{SPARE+4+2*rt}, a{aL+4*rt}"), 12, n - 1))
            chk.append(Item(Ins(f"v_rcp_f32 v{SPARE+4+2*rt}, v{SPARE+4+2*rt}", cost=2), 12, n - 1))
        P += [W(vm=0, lg=0), Ins("s_barrier")]
    P += schedule(M, sync, [tighten(reads), tighten(soft), tighten(cvts), tighten(dma), tighten(ring), tighten(chk)],
                  name=f"it{j}", verbose=(j in (1, 15)))
    if not last:
        L(P, f"s_cbranch_vccnz L_rare_{site}\nL_ret_{site}:")

def Ofrag(part, ks, rt):
    if ks < 7: return vr(OB + (ks * 3 + rt) * 8 + 4 * part)
    return vr(NEGM + 4 * rt) if part == 0 else ar(aO7 + rt * 8)

def transition(P):
    vx, vy = vK, vV
    L(P, f"""
s_mul_i32 s{sTmp}, s3, 24576
s_add_u32 s{sTmp}, s{sTmp}, {OXB}
v_add_u32 v{vx}, s{sTmp}, v{vL16}
s_xor_b32 s{sTmp}, s3, 1
s_mul_i32 s{sTmp}, s{sTmp}, 24576
s_add_u32 s{sTmp}, s{sTmp}, {OXB}
v_add_u32 v{vy}, s{sTmp}, v{vL16}
s_barrier
s_nop 1
""")
    for ks in range(8):
        for rt in range(3):
            rl = SPARE + 4 + 2 * rt
            if ks < 7:
                b = OB + (ks * 3 + rt) * 8; dst = b
            else:
                b = SB[0] + rt * 8; dst = NEGM + 4 * rt
                for k in range(8): L(P, f"v_accvgpr_read_b32 v{b+k}, a{aO7+rt*8+k}")
            for k in range(4):
                L(P, f"v_pk_mul_f32 {vr(b+2*k,2)}, {vr(b+2*k,2)}, {vr(rl,2)} op_sel_hi:[1,0]")
            for k in range(4):
                L(P, f"v_cvt_pk_bf16_f32 v{dst+k}, v{b+2*k}, v{b+2*k+1}")
            L(P, f"ds_write_b128 v{vx}, {vr(dst)} offset:{(ks*3+rt)*1024}")
    L(P, "s_waitcnt lgkmcnt(0)\ns_barrier")
    for ks in range(8):
        for rt in range(3):
            P.append(Ins(f"ds_read_b128 {Ofrag(1, ks, rt)}, v{vy} offset:{(ks*3+rt)*1024}", tag=f"ox{ks}"))
        if ks == 3: P.append(W(lg=12))
    L(P, f"""
s_mul_i32 s{sSt}, s3, {3*8192}
s_lshl_b32 s{sTmp}, s{sH}, 10
s_add_u32 s{sSt}, s{sSt}, s{sTmp}
""")

def phase3(P):
    SG = OPT["stag"] * G.var
    M = []
    F0 = 16 + 32 * 16
    for sg in range(28):
        si, i = sg >> 2, sg & 3
        for f in range(8):
            part, kk, tt = f >> 2, (f >> 1) & 1, f & 1
            for rt in range(3):
                acc = vr(SB[si & 1] + rt * 8 + tt * 4)
                c = "0" if (i == 0 and part == 0 and kk == 0) else acc
                M.append(Ins(f"{MF} {acc}, {ar(aFR + 4*((F0 + 8*sg + f) % 16))}, {Ofrag(part, 2*i+kk, rt)}, {c}"))
    sync, reads, dma, epi = [], [], [], []
    for s in range(28):
        g0 = max(24 * s - 13, -1)
        sync.append(Item([W(vm=f"wo{s}", lg=0), Ins("s_barrier")], g0, g0))
        for f in range(8):
            part, kk, tt = f >> 2, (f >> 1) & 1, f & 1
            F = F0 + 8 * s + f
            b = aFR + 4 * (F % 16)
            off = (s % 4) * 16384 + kk * 4096
            reads.append(Item(Ins(f"ds_read_b64_tr_b16 {ar(b,2)}, v{vA+2*part+tt} offset:{off}", tag=f"w{F}x"), g0, rdl(s, f)))
            reads.append(Item(Ins(f"ds_read_b64_tr_b16 {ar(b+2,2)}, v{vA+2*part+tt} offset:{off+2048}", tag=f"w{F}"), g0, rdl(s, f)))
        sync.append(Item(W(lg=f"w{F0+8*s+1}"), 24 * s - 1, 24 * s - 1))
        sync.append(Item(W(lg=f"w{F0+8*s+3}"), 24 * s + 5, 24 * s + 5))
        if s + 3 < 28:
            if s == 0: spaced(dma, wo_dma(3), 1 + G.var, 10, 3)
            else: spaced(dma, wo_dma(s + 3), 24 * s - 12 + SG, 24 * s + 10)
    sync.append(Item(W(lg=0), 24 * 28 - 13, 24 * 28 - 13))
    for si in range(7):
        e0 = 96 * (si + 1) + 6
        if si == 6: epi.append(Item(Ins("s_nop 7"), e0, e0))
        for rt in range(3):
            b = SB[si & 1] + rt * 8
            es = 96 * (si + 1) + 24 * rt - 12 + SG + 4 * DSP
            for k in range(4):
                epi.append(Item(Ins(f"v_cvt_pk_bf16_f32 v{b+k}, v{b+2*k}, v{b+2*k+1}"), e0, max(es - 1, e0 + 3)))
            if not OPT["nostore"]:
                epi.append(Item(Ins(f"buffer_store_dwordx4 {vr(b)}, v{vL16}, {srd(sWs)}, s{sSt} offen sc1", cost=2, tag="st"), es, max(es + 1, e0 + 4)))
            epi.append(Item(Ins(f"s_add_u32 s{sSt}, s{sSt}, {8192 if rt < 2 else 10*8192}"), e0, es + 20))
    P += schedule(M, sync, [tighten(reads), tighten(dma), tighten(epi)], name="p3", verbose=True)

def reduce_units(P, nu):
    a = 10
    LB = 64
    for k in range(nu):
        L(P, f"s_add_u32 s{sTmp}, s{sU}, {32*k}\ns_lshl_b32 s{sTmp}, s{sTmp}, 13")
        for src in range(8):
            if src == 4: L(P, f"s_add_u32 s{sTmp}, s{sTmp}, 4096")
            P.append(Ins(f"buffer_load_dwordx4 {vr(LB + (k*8+src)*4)}, v{vL16}, {srd(sWs)}, s{sTmp} offen offset:{(src&3)*1024} sc1", tag=f"u{nu}{k}s{src}"))
    L(P, f"""
v_and_b32 v{a}, 15, v0
v_mul_u32_u24 v{a}, 896, v{a}
v_bfe_u32 v{a+1}, v0, 4, 1
v_lshl_add_u32 v{a}, v{a+1}, 5, v{a}
v_lshrrev_b32 v{a+1}, 5, v0
v_lshl_add_u32 v{a}, v{a+1}, 4, v{a}
s_mov_b32 s{sU+3}, 0xffff0000
""")
    for k in range(nu):
        L(P, f"""
s_add_u32 s{sTmp}, s{sU}, {32*k}
s_mul_i32 s{sU+1}, s{sTmp}, 43
s_lshr_b32 s{sU+1}, s{sU+1}, 9
s_mul_i32 s{sU+2}, s{sU+1}, 12
s_sub_u32 s{sTmp}, s{sTmp}, s{sU+2}
s_add_u32 s{sU+1}, s{sU+1}, s{sRot}
s_sub_u32 s{sU+2}, s{sU+1}, 7
s_cselect_b32 s{sU+1}, s{sU+1}, s{sU+2}
s_lshl_b32 s{sU+1}, s{sU+1}, 7
s_mul_i32 s{sU+2}, s{sTmp}, 11
s_lshr_b32 s{sU+2}, s{sU+2}, 5
s_mul_i32 s{sTmp2}, s{sU+2}, 3
s_sub_u32 s{sTmp}, s{sTmp}, s{sTmp2}
s_mul_i32 s{sTmp}, s{sTmp}, {16*896}
s_add_u32 s{sU+1}, s{sU+1}, s{sTmp}
s_and_b32 s{sTmp}, s{sU+2}, 1
s_lshl_b32 s{sTmp}, s{sTmp}, 6
s_add_u32 s{sU+1}, s{sU+1}, s{sTmp}
s_lshr_b32 s{sTmp}, s{sU+2}, 1
s_mul_i32 s{sTmp}, s{sTmp}, {48*896}
s_add_u32 s{sU+1}, s{sU+1}, s{sTmp}
""")
        A = 16
        for src in range(8):
            P.append(W(vm=f"u{nu}{k}s{src}"))
            b = LB + (k * 8 + src) * 4
            for r in range(4):
                if src == 0:
                    L(P, f"v_lshlrev_b32 v{A+2*r}, 16, v{b+r}\nv_and_b32 v{A+2*r+1}, s{sU+3}, v{b+r}")
                else:
                    L(P, f"v_lshlrev_b32 v{A+8}, 16, v{b+r}\nv_and_b32 v{A+9}, s{sU+3}, v{b+r}\n"
                         f"v_pk_add_f32 {vr(A+2*r,2)}, {vr(A+2*r,2)}, {vr(A+8,2)}")
        D = 32 + 4 * k
        for r in range(4): L(P, f"v_cvt_pk_bf16_f32 v{D+r}, v{A+2*r}, v{A+2*r+1}")
        L(P, f"s_nop 1\nv_permlane16_swap_b32 v{D}, v{D+2}\nv_permlane16_swap_b32 v{D+1}, v{D+3}")
        L(P, f"buffer_store_dwordx4 {vr(D)}, v{a}, {srd(sOut)}, s{sU+1} offen")

def final(P):
    a = 10
    L(P, f"""
s_waitcnt vmcnt(0)
s_barrier
s_cmp_lg_u32 s3, 0
s_cbranch_scc1 L_nopoll
s_lshl_b32 s{sTmp}, s{sB}, 3
v_mov_b32 v{a}, s{sTmp}
v_mov_b32 v{a+1}, 1
s_mov_b64 exec, 1
buffer_atomic_add v{a+1}, v{a}, {srd(sDbg)}, 0 offen sc1
L_poll:
buffer_load_dword v{a+1}, v{a}, {srd(sDbg)}, 0 offen sc1
s_waitcnt vmcnt(0)
v_readfirstlane_b32 s{sTmp}, v{a+1}
s_nop 1
s_cmp_ge_u32 s{sTmp}, 8
s_cbranch_scc1 L_polled
s_sleep 2
s_branch L_poll
L_polled:
s_mov_b64 exec, -1
L_nopoll:
s_barrier
""")
    stamp(P)
    L(P, f"s_lshl_b32 s{sU}, s{sH}, 2\ns_add_u32 s{sU}, s{sU}, s3\ns_cmp_ge_u32 s{sU}, 20\ns_cbranch_scc1 L_two")
    reduce_units(P, 3)
    L(P, "s_branch L_fin\nL_two:")
    reduce_units(P, 2)
    L(P, "L_fin:")
    if OPT["stamps"]:
        G.last = True
        stamp(P)
        ns = G.nstamp
        if OPT["dbgst"]:
            L(P, f"""
s_waitcnt vmcnt(0)
s_cmp_lg_u32 s3, 0
s_cbranch_scc1 L_end
s_mov_b64 exec, 1
s_not_b32 s{sTmp}, s{STAMPS[0]}
v_mov_b32 v16, s{sTmp}
v_mov_b32 v{a}, 4
buffer_atomic_umax v16, v{a}, {srd(sDbg)}, 0 offen sc1
s_sub_u32 s{sTmp}, s{STAMPS[ns-1]+1}, s{STAMPS[0]+1}
v_mov_b32 v17, s{sTmp}
buffer_atomic_umax v17, v{a}, {srd(sDbg)}, 0 offen offset:56 sc1
""")
            for j in range(1, ns):
                L(P, f"v_mov_b32 v{18+j}, s{STAMPS[j]}\nbuffer_atomic_umax v{18+j}, v{a}, {srd(sDbg)}, 0 offen offset:{8*j} sc1")
            return
        L(P, f"""
s_waitcnt vmcnt(0)
s_cmp_lg_u32 s3, 0
s_cbranch_scc1 L_end
s_mov_b32 s{sWs}, s18
s_and_b32 s{sWs+1}, s19, 0xffff
s_mov_b32 s{sWs+2}, 0x10000000
s_mul_i32 s{sTmp}, s2, {ns*16}
s_add_u32 s{sTmp}, s{sTmp}, 0x8000000
v_mov_b32 v{a}, s{sTmp}
s_mov_b64 exec, 1
v_mov_b32 v17, 0
v_mov_b32 v19, 0
""")
        for j in range(ns):
            L(P, f"v_mov_b32 v16, s{STAMPS[j]}\nv_mov_b32 v18, s{STAMPS[j]+1}\n"
                 f"buffer_store_dwordx4 v[16:19], v{a}, {srd(sWs)}, 0 offen offset:{16*j}\ns_nop 1")

def main():
    out = None; rare = []; errs = []
    nvar = OPT["nvar"]
    for var in range(nvar):
        G.var = var; G.nstamp = 0
        P = []
        prologue(P)
        npro = len(P)
        phase1_and_qk0(P)
        stamp(P)
        init_path(P)
        marks = []
        for j in range(16):
            marks.append(len(P))
            iteration(P, j)
            if j & 1 == 0 and 2 <= j <= 14:
                L(P, f"s_cmp_lt_u32 s{sKo}, {(20 if OPT['early'] else 19)*16384}\ns_cbranch_scc1 L_loop_{var}")
        stamp(P)
        transition(P)
        stamp(P)
        phase3(P)
        stamp(P)
        resolve_waits(P)
        errs += check(P, f"main{var}")
        body = [i.txt for i in P[marks[1]:marks[3]]]
        for j in range(3, 15, 2):
            assert [i.txt for i in P[marks[j]:marks[j+2]]] == body, f"iteration pair {j} differs"
        if var == 0:
            out = P[:npro]
            if nvar > 1: L(out, f"s_cmp_eq_u32 s{sU}, 1\ns_cbranch_scc1 L_var_1")
        else:
            out += [Ins(".p2align 6"), Ins(f"L_var_{var}:")]
        out += P[npro:marks[1]] + [Ins(".p2align 6"), Ins(f"L_loop_{var}:")] + P[marks[1]:marks[3]] + P[marks[15]:]
        if var < nvar - 1: L(out, "s_branch L_final")
        R = []
        rare_path(R, f"i0_{var}", 1); rare_path(R, f"A_{var}", 0); rare_path(R, f"B_{var}", 1)
        errs += check(R, "rare")
        rare += R
    F = []
    final(F)
    resolve_waits(F)
    errs += check(F, "final")
    out += [Ins("L_final:")] + F
    for e in errs[:30]: print("HAZARD", e, file=sys.stderr)
    txt = f"""; fused GQA block: Q projection, attention, output projection, cross-workgroup reduce
; @launch grid=(256,1,1) block=(256,1,1) lds=163840
.amdgcn_target "amdgcn-amd-amdhsa--gfx950"
.text
.globl {KN}
.p2align 8
.type {KN},@function
{KN}:
"""
    txt += "\n".join(i.txt for i in out)
    txt += "\nL_end:\ns_endpgm\n"
    txt += "\n".join(i.txt for i in rare)
    txt += f"""
s_endpgm
.section .rodata,"a"
.p2align 6
.amdhsa_kernel {KN}
  .amdhsa_next_free_vgpr 512
  .amdhsa_next_free_sgpr 102
  .amdhsa_accum_offset 256
  .amdhsa_group_segment_fixed_size 0
  .amdhsa_kernarg_size 64
  .amdhsa_user_sgpr_count 2
  .amdhsa_user_sgpr_kernarg_segment_ptr 1
  .amdhsa_system_sgpr_workgroup_id_x 1
  .amdhsa_float_denorm_mode_32 3
.end_amdhsa_kernel
"""
    open(sys.argv[1], "w").write(txt)
    print("instructions:", len(out), "stamps:", G.nstamp, "hazards:", len(errs), file=sys.stderr)

main()
```

```python
import re, sys

class Ins:
    def __init__(self, txt, cost=1, tag=None, lg=None, vm=None):
        self.txt = txt; self.cost = cost; self.tag = tag
        self.lg = lg; self.vm = vm
        self.kind = classify(txt)
    def __repr__(self): return self.txt

TRANS = ("v_exp_f32", "v_rcp_f32", "v_log_f32", "v_rsq_f32", "v_sqrt_f32")
def classify(t):
    m = t.split()[0] if t.strip() else ""
    if m.endswith(":"): return "label"
    if m.startswith(";") or m.startswith("."): return "raw"
    if m.startswith("v_mfma"): return "mfma"
    if m in TRANS: return "trans"
    if m.startswith("v_"): return "valu"
    if m.startswith("ds_"): return "ds"
    if m.startswith("buffer_") or m.startswith("global_"): return "vmem"
    if m == "s_waitcnt" or m == "WAIT": return "wait"
    if m == "s_barrier": return "bar"
    if m in ("s_load_dwordx16", "s_load_dwordx2", "s_load_dwordx4", "s_memtime", "s_memrealtime", "s_load_dword", "s_load_dwordx8"): return "smem"
    if m.startswith("s_cbranch") or m == "s_branch": return "br"
    if m.startswith("s_"): return "salu"
    raise ValueError("unknown instr " + t)

def W(lg=None, vm=None):
    return Ins("WAIT", lg=lg, vm=vm)

class Item:
    def __init__(self, ins, e, d, cost=None, deps=(), lag=1):
        self.deps = list(deps); self.at = None; self.lag = lag
        if not isinstance(ins, list): ins = [ins]
        self.ins = [i if isinstance(i, Ins) else Ins(i) for i in ins]
        self.e = e; self.d = d
        self.cost = cost if cost is not None else sum(i.cost for i in self.ins)

def iclass(it):
    ks = {i.kind for i in it.ins}
    if ks <= {"salu", "wait", "bar", "smem"}: return "s"
    if ks == {"ds"}: return "d"
    if ks == {"vmem"}: return "v"
    assert ks <= {"valu", "trans"}, it.ins
    return "a"

def schedule(mfmas, sync, streams, name="", verbose=False):
    n = len(mfmas)
    out = []
    heads = [0] * len(streams)
    over = 0
    pre = {}
    for it in sync:
        assert -1 <= it.e < n, (name, it.e, n)
        pre.setdefault(it.e, []).append(it)
    overs = []
    for g in range(-1, n):
        if g >= 0: out.append(mfmas[g])
        if g == -1:
            fx = pre.get(g, [])
            for it in fx:
                if any(i.kind == "bar" for i in it.ins): out.extend(it.ins); over += it.cost
            while True:
                best = None
                for si, st in enumerate(streams):
                    if heads[si] < len(st) and st[heads[si]].d <= g:
                        best = si; break
                if best is None: break
                it = streams[best][heads[best]]; heads[best] += 1; it.at = g
                out.extend(it.ins); over += it.cost
            for it in fx:
                if not any(i.kind == "bar" for i in it.ins): out.extend(it.ins); over += it.cost
            overs.append((g, over))
            continue
        lead, mem, val, trail = [], [], [], []
        room = 2
        for it in pre.get(g, []):
            for i in it.ins:
                if lead: room -= 1
                lead.append(i)
        pos = {}
        dls = []
        for si, st in enumerate(streams):
            for it in st[heads[si]:heads[si] + 40]:
                if iclass(it) in "dv" and it.d <= g + 30: dls.append(it.d)
        dls.sort()
        press = any(k + 1 > d - g + 1 for k, d in enumerate(dls))
        while True:
            best = None
            for si, st in enumerate(streams):
                if heads[si] >= len(st): continue
                it = st[heads[si]]
                if it.e > g: continue
                if any(x.at is None or (x.at + it.lag > g and it.d > g) for x in it.deps): continue
                c = iclass(it); p0 = pos.get(si, -1)
                forced = it.d <= g
                if c == "s":
                    hasv = any(i.kind == "vmem" for i in mem)
                    if not lead and p0 <= 0 and not hasv: where, cost = 0, it.cost - 1
                    elif lead and not mem and not val and not trail: where, cost = 0, it.cost
                    else: where, cost = 3, it.cost
                elif c == "d":
                    where, cost = 1, 1
                    if mem or p0 > 1 or trail: cost = 3
                    if press and len(mem) == 1 and "b64" in mem[0].txt and "b64" in it.ins[0].txt and p0 <= 1 and not val and not trail and room >= 1:
                        cost = 2; forced = True
                elif c == "v":
                    where, cost = 1, 2
                    if mem or p0 > 1 or val or trail or any(i.kind == "salu" for i in lead): cost = 4
                else:
                    where, cost = 2, it.cost
                    if p0 > 2: where = 3
                if cost <= room or forced:
                    cp = {"d": 0, "v": 0, "s": 1, "a": 2}[c]
                    if c == "a" and it.cost == 2 and "swap" in it.ins[0].txt: cp = 1.5
                    key = (0, cp, it.d, si) if not forced else (-1, cp, it.d, si)
                    if best is None or key < best[0]: best = (key, si, where, cost)
            if best is None: break
            _, si, where, cost = best
            it = streams[si][heads[si]]; heads[si] += 1; it.at = g
            if pos.get(si, -1) > where: where = pos[si]
            pos[si] = where
            (lead, mem, val, trail)[where].extend(it.ins)
            room -= cost
        out.extend(lead + mem + val + trail)
        if room < 0: over += -room; overs.append((g, -room))
    left = 0
    for si, st in enumerate(streams):
        while heads[si] < len(st):
            out.extend(st[heads[si]].ins); left += st[heads[si]].cost; heads[si] += 1
    fixed = []
    for i in out:
        if fixed and i.kind == "vmem" and " lds" in i.txt and fixed[-1].kind == "salu" and " m0," in fixed[-1].txt: fixed.append(Ins("s_nop 0"))
        fixed.append(i)
    out = fixed
    if verbose: print(f"; sched {name}: mfma {n} overflow {over} leftover {left} at {overs[:24]}", file=sys.stderr)
    return out

def tighten(stream):
    d = 10**9
    for it in reversed(stream):
        d = min(d, it.d); it.d = d
    return stream

def resolve_waits(prog):
    for i, ins in enumerate(prog):
        if ins.txt != "WAIT": continue
        parts = []
        for which, kinds, mx in (("vm", ("vmem",), 63), ("lg", ("ds",), 15)):
            tgt = getattr(ins, which)
            if tgt is None: continue
            if isinstance(tgt, int): n = tgt
            else:
                tags = tgt if isinstance(tgt, (list, tuple)) else [tgt]
                n = None
                cnt = 0
                for k in range(i - 1, -1, -1):
                    p = prog[k]
                    if p.kind in kinds:
                        if p.tag in tags: n = cnt; break
                        cnt += 1
                    if which == "lg" and p.kind == "smem": raise ValueError("smem inside counted lgkm window")
                if n is None: raise ValueError(f"wait target {tgt} not found")
                n = min(n, mx)
            parts.append(("vmcnt(%d)" if which == "vm" else "lgkmcnt(%d)") % n)
        ins.txt = ("s_waitcnt " + " ".join(parts)) if parts else "s_nop 0"
        if not parts: ins.kind = "salu"

REG = re.compile(r"\b([vas])\[(\d+):(\d+)\]|\b([vas])(\d+)\b|\b(vcc|m0|exec|scc)\b")
def regs_of(op):
    r = set()
    for m in REG.finditer(op):
        if m.group(1): r |= {(m.group(1), k) for k in range(int(m.group(2)), int(m.group(3)) + 1)}
        elif m.group(4): r.add((m.group(4), int(m.group(5))))
        else: r.add((m.group(6), 0))
    return r

def rw(ins):
    t = ins.txt.split(";")[0].strip()
    m = t.split()[0]
    rest = t[len(m):].strip()
    ops = [o.strip() for o in rest.split(",")] if rest else []
    k = ins.kind
    R, Wr = set(), set()
    allr = [regs_of(o) for o in ops]
    if k == "mfma":
        Wr = allr[0]; R = allr[1] | allr[2] | allr[3]
    elif k == "ds":
        if m.startswith("ds_read"): Wr = allr[0]; R = set().union(*allr[1:])
        else: R = set().union(*allr)
    elif k == "vmem":
        if " lds" in t: R = set().union(*allr) | {("m0", 0)}
        elif m.startswith("buffer_load") or m.startswith("global_load"): Wr = allr[0]; R = set().union(*allr[1:])
        else: R = set().union(*allr)
    elif k in ("valu", "trans"):
        if "swap" in m: Wr = allr[0] | allr[1]; R = set(Wr)
        else:
            Wr = allr[0]; R = set().union(*allr[1:]) if len(allr) > 1 else set()
            if m.startswith("v_cndmask") and len(ops) == 3: R.add(("vcc", 0))
            if m.startswith("v_fmac") or m.startswith("v_dot2c"): R |= Wr
    elif k == "salu":
        if m.startswith("s_cmp") or m in ("s_nop", "s_sleep", "s_setprio", "s_endpgm"): R = set().union(*allr) if allr else set()
        else:
            Wr = allr[0]; R = set().union(*allr[1:]) if len(allr) > 1 else set()
    elif k == "smem":
        Wr = allr[0]; R = set().union(*allr[1:]) if len(allr) > 1 else set()
    elif k == "br":
        if "vcc" in m: R = {("vcc", 0)}
    return R, Wr

def states(ins):
    if ins.kind in ("label", "raw"): return 0
    if ins.txt.startswith("s_nop"): return int(ins.txt.split()[1]) + 1
    return 1

def check(prog, name=""):
    errs = []
    info = [(i, rw(i)) for i in prog]
    pend_ds = []; pend_vm = []
    for n, (ins, (R, Wr)) in enumerate(info):
        k = ins.kind
        if k in ("label", "raw"): continue
        if k == "wait":
            mv = re.search(r"vmcnt\((\d+)\)", ins.txt); ml = re.search(r"lgkmcnt\((\d+)\)", ins.txt)
            if mv:
                c = int(mv.group(1)); pend_vm = pend_vm[len(pend_vm) - c:] if c < len(pend_vm) else pend_vm
                if c == 0: pend_vm = []
            if ml:
                c = int(ml.group(1)); pend_ds = pend_ds[len(pend_ds) - c:] if c < len(pend_ds) else pend_ds
                if c == 0: pend_ds = []
            continue
        touch = R | Wr
        for lst, nm in ((pend_ds, "ds"), (pend_vm, "vm")):
            for (pi, pw) in lst:
                if pw & touch: errs.append(f"{name}[{n}] {ins.txt}  touches pending {nm} dest of: {prog[pi].txt}")
        if k == "ds" or k == "smem": pend_ds.append((n, Wr))
        if k == "vmem": pend_vm.append((n, Wr))
        if len(pend_vm) > 63: errs.append(f"{name}[{n}] more than 63 vmem outstanding")
        dist = 0
        for j in range(n - 1, max(-1, n - 40), -1):
            p, (pR, pW) = info[j]
            if p.kind in ("label", "raw"): continue
            if dist >= 12: break
            need = 0
            pv = p.kind in ("valu", "trans")
            if pv and k == "mfma" and (pW & R): need = 2
            if p.kind == "mfma":
                if k in ("valu", "trans") and (pW & touch): need = 8
                if k in ("ds", "vmem") and (pW & touch): need = 8
                if k == "mfma":
                    ops = [o.strip() for o in ins.txt.split(None, 1)[1].split(",")]
                    if pW & (regs_of(ops[1]) | regs_of(ops[2])): need = 8
                    c = regs_of(ops[3])
                    if (pW & c) and pW != c: need = max(need, 6)
                    if (pW & Wr) and not (pW == c and pW == Wr): need = max(need, 6)
                if k in ("valu", "trans"):
                    pops = [o.strip() for o in p.txt.split(None, 1)[1].split(",")]
                    if regs_of(pops[3]) & Wr: need = max(need, 3)
            if p.kind == "trans" and k == "valu" and (pW & R): need = max(need, 1)
            if pv and "permlane" in ins.txt and (pW & R): need = max(need, 2)
            if pv and "readfirstlane" in ins.txt and (pW & R): need = max(need, 1)
            sW = {r for r in pW if r[0] in ("s", "vcc")}
            if pv and sW:
                if k in ("valu", "trans") and (sW & R): need = max(need, 2)
                if k == "vmem" and (sW & R): need = max(need, 5)
            if p.kind == "salu" and ("m0", 0) in pW and k == "vmem" and ("m0", 0) in R: need = max(need, 1)
            if p.kind == "vmem" and "store_dwordx4" in p.txt:
                data = regs_of(p.txt.split(None, 1)[1].split(",")[0])
                if data & Wr: need = max(need, 2)
            if need > dist: errs.append(f"{name}[{n}] {ins.txt}  needs {need} states after [{j}] {p.txt} (has {dist})")
            dist += states(p)
    return errs
```

```python
import sys, math, struct
from asmlib import *

KN = "standalone__gqa_block_cached__near_ridge_kernel"
OPT = dict(stamps="", nt_kv=True, nt_x=False, nt_w=False, pretouch=True, map2=True, nvar=1, stag=2, xlead=4, zero="",
           codepf=True, out_flag="", p3x="", norotd=True, kvs=7, kvsp=4, xfirst=2, tlb=True, wqsp=3, ptat=7, npair=6,
           kvn=4, kvl=20, k0early=True, sleep=2)
for a in sys.argv[2:]:
    k, v = a.split("=")
    assert k in OPT, k
    OPT[k] = type(OPT[k])(int(v)) if not isinstance(OPT[k], str) else v

def f2u(f): return struct.unpack("<I", struct.pack("<f", f))[0]
CSCALE = math.log2(math.e) / 16.0
THRESH = 8.0
KS = 16896
VB = 4 * KS
WQB = 3 * KS
OXB = 65536
FLAG0 = 32 << 20
XU = [0, 12288, 24576, 36864, 118272, 151552, 0]
WS4 = 135168
NR = 5
def wslot(s): return (s + 1) % NR
NP = OPT["npair"]
STG = [("p", k) for k in range(NP)] + [(0, st) for st in range(NP // 2, 7)] + [(1, st) for st in range(NP // 2, 7)] + \
      [(2, st) for st in range(7)] + [(3, st) for st in range(7)]
assert len(STG) == 28 and NP % 2 == 0
def unit_of(s, hi):
    t, k = STG[s]
    return (hi, k) if t == "p" else (t, 2 * k + hi)
XNEED = {}
for _s in range(27, -1, -1):
    for _h in range(2): XNEED[unit_of(_s, _h)[1]] = _s
DONE = {}
for _s in range(28):
    for _h in range(2): DONE[unit_of(_s, _h)[0]] = 24 * (_s + 1)
NT_KV = " nt" if OPT["nt_kv"] else ""
NT_X = " nt" if OPT["nt_x"] else ""
NT_W = " nt" if OPT["nt_w"] else ""

sFl, sPT = 4, 12
sX, sK, sV, sWq, sWo, sWs, sDbg, sOut = 20, 24, 28, 32, 36, 40, 44, 48
sB, sH, sRot, sC, sT, sKVm, sWqm, sWom = 52, 53, 54, 55, 56, 57, 58, 59
sWqOff = 60
sMask, sOk = 64, 66
sTmp, sKo, sVo = 67, 68, 69
sKx, sVx, sM0V, sRd = 70, 72, 74, 75
sCg, sTmp2, sSt, sWoW = 76, 77, 78, 79
sU = 80
sHo, sHm = 82, 83
sXOff, sXm = 84, 91
sSrc = 84
STAMPS = [96, 98, 100, 8, 16, 0, 20]
def srd(d): return f"s[{d}:{d+3}]"
vK, vV, vK0, vV0 = 1, 2, 3, 4
vD = 5
vMx = 9
vA = 10
vL16 = 14
vT = 15
SB = [16, 40]
NEGM = 64
SPARE = 76
OB = 88
ACC1 = [16, 64, 112, 64]
FR1 = 160
vW = 224
vXo = 228
vXr = 232
DUMMY = 236
vPT = 234
vA2 = 246
vXr2 = 252
aQ = 0
aL, aOnes = 108, 120
aFR = 128
aO7 = 192
aX = 88
def vr(b, n=4): return f"v[{b}:{b+n-1}]"
def ar(b, n=4): return f"a[{b}:{b+n-1}]"
def Qf(rt, ds): return ar(aQ + 4 * (ds * 3 + rt))
def Xf(slot, rt): return ar(aX + 4 * (slot * 3 + rt))
def Oacc(dt, rt):
    ks = dt >> 1
    if ks < 7: return vr(OB + (ks * 3 + rt) * 8 + (dt & 1) * 4)
    return ar(aO7 + rt * 8 + (dt & 1) * 4)
def Sreg(buf, rt, T): return SB[buf] + rt * 8 + T * 4
MF = "v_mfma_f32_16x16x32_bf16"

vFc = 112
vFl, vFs, vPoll = 3, 4, 9
aSel = 96
aU0 = 0

class G: var = 0; nstamp = 0
def stamp(P, kind):
    if not any(c in OPT["stamps"] for c in kind): return
    j = G.nstamp; G.nstamp += 1
    P += [Ins("s_memrealtime s[92:93]"), Ins("s_memtime s[94:95]"), Ins("s_waitcnt lgkmcnt(0)"),
          Ins(f"s_mov_b32 s{STAMPS[j]}, s92"), Ins(f"s_mov_b32 s{STAMPS[j]+1}, s94")]

def L(P, s):
    for line in s.strip().split("\n"):
        line = line.strip()
        if line: P.append(Ins(line))

def spaced(lst, items, e0, dmax, sp, lo=0):
    k = 0
    for x in items:
        e = min(e0 + int(sp * k), dmax)
        if x[0].kind == "vmem":
            lst.append(Item(x, e, min(e + 1, dmax))); k += 1
        else:
            lst.append(Item(x, lo, max(e - 1, -1)))

def inline(P, grp):
    for x in grp:
        P += x
        if " m0," in x[-1].txt: P.append(Ins("s_nop 0"))

def wq_dma(s):
    r = []
    t, k = STG[s]
    if t == "p":
        so = sWqOff + (k >> 1)
        if k & 1:
            r.append([Ins(f"s_add_u32 s{sTmp2}, s{so}, 262144")]); so = sTmp2
    else:
        so = sWqOff + k
        if STG[s - 1][0] != t:
            r.append([Ins(f"s_xor_b32 s{sTmp}, s{sRd}, {t}")])
            r.append([Ins(f"s_lshl_b32 s{sTmp}, s{sTmp}, 7")])
            r.append([Ins(f"s_lshl_b32 s{sTmp2}, s{sU+1}, 18")])
            r.append([Ins(f"s_add_u32 s{sTmp}, s{sTmp}, s{sTmp2}")])
            r.append([Ins(f"s_add_u32 s{sWq}, s10, s{sTmp}"), Ins(f"s_addc_u32 s{sWq+1}, s11, 0")])
    r.append([Ins(f"s_add_u32 m0, s{sWqm}, {wslot(s) * 16384 if wslot(s) < 4 else WS4 - WQB}")])
    for ch in range(4):
        r.append([Ins(f"buffer_load_dwordx4 v{vW+ch}, {srd(sWq)}, s{so} offen offset:{ch*1024}{NT_W} lds", cost=2, tag=f"wq{s}")])
    return r

def x_dma(u):
    r = [[Ins(f"s_add_u32 m0, s{sXm}, {XU[u]}")]]
    for i in range(3):
        r.append([Ins(f"buffer_load_dwordx4 v{vXo+i}, {srd(sX)}, s{sXOff+u} offen offset:{i*1024}{NT_X} lds", cost=2, tag=f"x{u}")])
    return r

def kv_group(isK, m0txt, tag):
    s, o = (sK, sKo) if isK else (sV, sVo)
    r = [[Ins(m0txt)]]
    for k in range(4):
        r.append([Ins(f"buffer_load_dwordx4 v{vD+k}, {srd(s)}, s{o} offen offset:{k*1056}{NT_KV} lds", cost=2, tag=tag)])
    r.append([Ins(f"s_add_u32 s{o}, s{o}, 16384")])
    return r

def kv_piece(isK, j, lds, tag, ks):
    s = sK if isK else sV
    r = [[Ins(f"s_add_u32 s{sHm}, s{sHo}, {j*16384}")], [Ins(f"s_add_u32 m0, s{sKVm}, {lds}")]]
    for k in ks:
        r.append([Ins(f"buffer_load_dwordx4 v{vD+k}, {srd(s)}, s{sHm} offen offset:{k*1056}{NT_KV} lds", cost=2, tag=tag)])
    return r

def wo_dma(sg):
    i = sg & 3
    r = []
    if i == 0 and sg > 0:
        r.append([Ins(f"s_add_u32 s{sCg}, s{sCg}, 128")])
        r.append([Ins(f"s_sub_u32 s{sTmp2}, s{sCg}, s{sWoW}")])
        r.append([Ins(f"s_cmp_eq_u32 s{sTmp2}, 896"), Ins(f"s_cselect_b32 s{sCg}, s{sWoW}, s{sCg}")])
    r.append([Ins(f"s_add_u32 s{sTmp2}, s{sCg}, s{sWqOff+i}")])
    r.append([Ins(f"s_add_u32 m0, s{sWom}, {(sg & 7)*16384}")])
    for ch in range(4):
        r.append([Ins(f"buffer_load_dwordx4 v{vD+ch}, {srd(sWo)}, s{sTmp2} offen offset:{ch*1024}{NT_W} lds", cost=2, tag=f"wo{sg}")])
    return r

def mksrd(d, base, add, size, neg=None):
    if {sK: "k", sV: "k", sWq: "q", sX: "x", sWo: "o"}.get(d, "-") in OPT["zero"]: size = 0
    t = f"s_add_u32 s{d}, s{base}, {add}\ns_addc_u32 s{d+1}, s{base+1}, {neg or 0}\ns_and_b32 s{d+1}, s{d+1}, 0xffff\n"
    return t + f"s_mov_b32 s{d+2}, {size}\ns_mov_b32 s{d+3}, 0x20000\n"

def prologue(P):
    if OPT["stamps"]: L(P, "s_memrealtime s[92:93]\ns_memtime s[94:95]")
    L(P, "s_cmp_ge_u32 s2, 256\ns_cbranch_scc1 L_end\ns_load_dwordx16 s[4:19], s[0:1], 0")
    if OPT["codepf"]:
        L(P, """s_getpc_b64 s[20:21]
L_pc:
s_lshr_b32 s22, s2, 3
v_lshl_add_u32 v250, v0, 5, s22
v_lshlrev_b32 v250, 7, v250
v_min_u32 v250, (L_end-L_pc), v250
global_load_dword v251, v250, s[20:21]""")
    L(P, f"v_lshrrev_b32 v{vT}, 6, v0\nv_and_b32 v0, 63, v0")
    if OPT["map2"]:
        L(P, f"""s_lshr_b32 s{sB}, s2, 4
v_readfirstlane_b32 s3, v{vT}
s_lshl_b32 s{sTmp}, s2, 2
s_and_b32 s{sTmp}, s{sTmp}, 16
s_add_u32 s{sB}, s{sB}, s{sTmp}
s_and_b32 s{sH}, s2, 3
s_lshl_b32 s{sH}, s{sH}, 1
s_bfe_u32 s{sTmp}, s2, 0x10003
s_add_u32 s{sH}, s{sH}, s{sTmp}""")
    else:
        L(P, f"s_lshr_b32 s{sB}, s2, 3\nv_readfirstlane_b32 s3, v{vT}\ns_and_b32 s{sH}, s2, 7")
    a, b, c = DUMMY, DUMMY + 1, DUMMY + 2
    L(P, f"""
s_mul_i32 s{sTmp}, s{sB}, 37
s_lshr_b32 s{sTmp}, s{sTmp}, 8
s_mul_i32 s{sTmp}, s{sTmp}, 7
s_sub_u32 s{sRot}, s{sB}, s{sTmp}
s_and_b32 s{sRd}, s{sB}, {0 if OPT["norotd"] else 3}
v_lshlrev_b32 v{vL16}, 4, v0
v_lshrrev_b32 v{a}, 1, v0
v_lshrrev_b32 v{b}, 4, v0
v_xor_b32 v{a}, v{a}, v{b}
v_and_b32 v{a}, 3, v{a}
v_lshrrev_b32 v{b}, 1, v{a}
v_lshlrev_b32 v{b}, 2, v{b}
v_and_b32 v{c}, 1, v{a}
v_or_b32 v{b}, v{b}, v{c}
v_and_b32 v{c}, 1, v0
v_lshl_or_b32 v{b}, v{c}, 1, v{b}
v_lshlrev_b32 v{b}, 4, v{b}
v_bfe_u32 v{c}, v0, 3, 2
v_lshl_add_u32 v{b}, v{c}, 13, v{b}
v_lshrrev_b32 v{c}, 5, v0
v_lshl_add_u32 v{vW}, v{c}, 16, v{b}
v_add_u32 v{vW+1}, {4*8192-1024}, v{vW}
v_add_u32 v{vW+2}, {16*8192-2048}, v{vW}
v_add_u32 v{vW+3}, {20*8192-3072}, v{vW}
s_and_b32 s{sU}, s3, 1
s_lshr_b32 s{sU+1}, s3, 1
s_lshl_b32 s{sU+2}, s{sU}, 9
s_lshl_b32 s{sWqm}, s3, 12
s_add_u32 s{sWqm}, s{sWqm}, {WQB}
s_mul_i32 s{sXm}, s3, 3072
s_mul_i32 s{sTmp}, s3, 24
v_lshrrev_b32 v{a}, 3, v0
v_add_u32 v{a}, s{sTmp}, v{a}
v_and_b32 v{c}, 7, v0
""")
    for i in range(3):
        L(P, f"""
v_bfe_u32 v{b}, v{a}, 1, 3
v_xor_b32 v{b}, v{b}, v{c}
v_lshlrev_b32 v{b}, 4, v{b}
v_mul_u32_u24 v{vXo+i}, 896, v{a}
v_add_u32 v{vXo+i}, v{vXo+i}, v{b}
""")
        if i: L(P, f"v_subrev_u32 v{vXo+i}, {1024*i}, v{vXo+i}")
        if i < 2: L(P, f"v_add_u32 v{a}, 8, v{a}")
    L(P, f"s_mov_b32 s{sCg}, s{sRot}")
    def koff(st):
        L(P, f"""
s_lshl_b32 s{sWqOff+st}, s{sCg}, 19
s_add_u32 s{sWqOff+st}, s{sWqOff+st}, s{sU+2}
s_lshl_b32 s{sXOff+st}, s{sCg}, 7
s_add_u32 s{sCg}, s{sCg}, 1
s_cmp_eq_u32 s{sCg}, 7
s_cselect_b32 s{sCg}, 0, s{sCg}
""")
    koff(0); koff(1)
    L(P, f"""
s_lshl_b32 s{sTmp}, s{sH}, 10
s_xor_b32 s{sTmp2}, s{sRd}, s{sU+1}
s_lshl_b32 s{sTmp2}, s{sTmp2}, 7
s_mul_i32 s{sSt}, s{sB}, 86016
s_waitcnt lgkmcnt(0)
""")
    if OPT["stamps"]:
        L(P, f"s_mov_b32 s{STAMPS[0]}, s92\ns_mov_b32 s{STAMPS[0]+1}, s94"); G.nstamp = 1
    stamp(P, "a")
    L(P, f"s_add_u32 s10, s10, s{sTmp}\ns_addc_u32 s11, s11, 0\ns_and_b32 s11, s11, 0xffff")
    L(P, mksrd(sWq, 10, f"s{sTmp2}", 447 * 8192 + 640))
    inline(P, wq_dma(0))
    L(P, mksrd(sX, 4, f"s{sSt}", 86016))
    inline(P, x_dma(0))
    a, b, c = DUMMY + 7, DUMMY + 8, DUMMY + 9
    L(P, f"""
v_bfe_u32 v{a}, v0, 2, 3
v_and_b32 v{c}, 3, v0
v_lshlrev_b32 v{b}, 7, v{a}
v_lshl_add_u32 v{b}, v{c}, 3, v{b}
v_lshrrev_b32 v{c}, 5, v0
v_lshl_add_u32 v{b}, v{c}, 11, v{b}
s_lshl_b32 s{sTmp}, s{sU}, 12
s_add_u32 s{sTmp}, s{sTmp}, {WQB}
v_add_u32 v{b}, s{sTmp}, v{b}
v_lshrrev_b32 v{a}, 1, v{a}
""")
    for t in range(4):
        L(P, f"v_xor_b32 v{c}, {t}, v{a}\nv_lshl_add_u32 v{vA+t}, v{c}, 5, v{b}\nv_add_u32 v{vA2+t}, {WS4 - WQB}, v{vA+t}")
    L(P, f"""
v_and_b32 v{a}, 15, v0
v_lshlrev_b32 v{b}, 7, v{a}
s_mul_i32 s{sTmp}, s{sU+1}, 6144
v_add_u32 v{b}, s{sTmp}, v{b}
v_lshrrev_b32 v{a}, 1, v{a}
v_lshrrev_b32 v{c}, 4, v0
v_xor_b32 v{a}, v{a}, v{c}
v_lshl_add_u32 v{vXr}, v{a}, 4, v{b}
v_xor_b32 v{a}, 4, v{a}
v_lshl_add_u32 v{vXr+1}, v{a}, 4, v{b}
v_add_u32 v{vXr2}, {XU[4]}, v{vXr}
v_add_u32 v{vXr2+1}, {XU[4]}, v{vXr+1}
""")
    inline(P, wq_dma(1))
    for st in range(2, 7): koff(st)
    L(P, f"""
s_lshl_b32 s{sTmp}, s{sB}, 3
s_add_u32 s{sTmp}, s{sTmp}, s{sH}
s_lshl_b32 s{sTmp}, s{sTmp}, 18
s_sub_u32 s{sTmp}, s{sTmp}, 96
s_cselect_b32 s{sTmp2}, -1, 0
""")
    L(P, mksrd(sK, 6, f"s{sTmp}", 262144 + 96, f"s{sTmp2}") + mksrd(sV, 8, f"s{sTmp}", 262144 + 96, f"s{sTmp2}"))
    inline(P, x_dma(1) + wq_dma(2))
    L(P, f"s_mul_i32 s{sTmp}, s{sH}, 458752\n" + mksrd(sWo, 12, f"s{sTmp}", 458752))
    L(P, f"s_mul_i32 s{sTmp}, s{sB}, 688128\n" + mksrd(sWs, 18, f"s{sTmp}", 688128))
    L(P, mksrd(sOut, 14, f"s{sSt}", 86016) + mksrd(sDbg, 16, 0, 256))
    L(P, f"""
s_mov_b32 s{sC}, {hex(f2u(CSCALE))}
s_mov_b32 s{sT}, {hex(f2u(THRESH))}
s_mul_i32 s{sKVm}, s3, 4224
s_lshl_b32 s{sHo}, s3, 12
s_add_u32 s{sVo}, s{sHo}, {3*16384}
s_add_u32 s{sKo}, s{sHo}, {4*16384}
s_mov_b32 s{sKx}, 0
s_mov_b32 s{sKx+1}, {KS}
s_mov_b32 s{sVx}, {VB+3*KS}
s_mov_b32 s{sVx+1}, {VB+2*KS}
s_add_u32 s{sM0V}, s{sKVm}, {VB+KS}
s_lshl_b32 s{sWom}, s{sU}, 13
s_lshl_b32 s{sTmp}, s{sU+1}, 12
s_add_u32 s{sWom}, s{sWom}, s{sTmp}
s_mul_i32 s{sWoW}, s{sU}, {256*896}
s_mul_i32 s{sTmp}, s{sU+1}, {32*896}
s_add_u32 s{sWoW}, s{sWoW}, s{sTmp}
s_lshl_b32 s{sTmp}, s{sRd}, 7
v_xor_b32 v{vD+3}, s{sTmp}, v{vL16}
v_add_u32 v{vD}, 96, v{vD+3}
v_add_u32 v{vD+1}, 64, v{vD+3}
v_add_u32 v{vD+2}, 32, v{vD+3}
v_and_b32 v{a}, 7, v0
v_mul_u32_u24 v{a}, 1056, v{a}
v_bfe_u32 v{b}, v0, 3, 1
v_lshl_add_u32 v{a}, v{b}, 9, v{a}
v_lshrrev_b32 v{b}, 4, v0
v_lshl_add_u32 v{vK0}, v{b}, 4, v{a}
v_mov_b32 v{vK}, v{vK0}
v_bfe_u32 v{a}, v0, 2, 3
v_mul_u32_u24 v{b}, 1056, v{a}
v_lshrrev_b32 v{c}, 5, v0
v_lshl_add_u32 v{b}, v{c}, 9, v{b}
v_and_b32 v{c}, 3, v0
v_lshl_add_u32 v{vV0}, v{c}, 3, v{b}
v_add_u32 v{vV}, {VB+3*KS}, v{vV0}
""")
    inline(P, wq_dma(3))
    for u in range(2, OPT["xfirst"]): inline(P, x_dma(u))
    if OPT["pretouch"]:
        n = 16 if OPT["map2"] else 32
        rows = 448 // n
        L(P, f"""
s_and_b32 s{sTmp}, s{sB}, {n-1}
s_mul_i32 s{sTmp}, s{sTmp}, {rows}
s_lshl_b32 s{sTmp2}, s3, 3
s_add_u32 s{sTmp2}, s{sTmp2}, s{sTmp}
s_add_u32 s{sTmp}, s{sTmp}, {rows-1}
v_lshrrev_b32 v{a}, 3, v0
v_add_u32 v{a}, s{sTmp2}, v{a}
v_min_u32 v{a}, s{sTmp}, v{a}
v_lshlrev_b32 v{a}, 13, v{a}
v_and_b32 v{b}, 7, v0
{f"v_or_b32 v{b}, 2, v{b}" if OPT["norotd"] else ""}
v_lshl_add_u32 v{vPT}, v{b}, 7, v{a}
""")
        L(P, mksrd(sPT, 10, 0, 447 * 8192 + 1024))
    L(P, f"""
s_lshl_b32 s{sTmp}, s{sB}, 2
s_add_u32 s{sTmp}, s{sTmp}, s3
s_lshl_b32 s{sTmp}, s{sTmp}, 7
s_add_u32 s{sTmp}, s{sTmp}, {FLAG0}
""" + mksrd(sFl, 18, f"s{sTmp}", 32) + f"""
s_lshl_b32 s{sTmp}, s{sH}, 2
v_lshlrev_b32 v{a}, 12, v0
v_add_u32 v{vFc}, s{sTmp}, v{a}
v_mov_b32 v{vFc+2}, 0
""")
    P.append(Ins(f"buffer_store_dword v{vFc+2}, v{vFc}, {srd(sFl)}, 0 offen sc1", tag="clr"))
    if OPT["tlb"]:
        L(P, f"v_mov_b32 v{a}, 96")
        for i, d in enumerate((sK, sV, sWo, sWs, sOut)):
            P.append(Ins(f"buffer_load_dword v{DUMMY+i}, v{a}, {srd(d)}, 0 offen"))

def q_epilogue(dg, win, sA, sB_, sC_):
    base = ACC1[dg]
    u = 0
    for e in range(2):
        for rt in range(3):
            e0, d0 = win(u); u += 1
            A = base + ((2 * e) * 3 + rt) * 4; B = base + ((2 * e + 1) * 3 + rt) * 4
            for k in range(4): sA.append(Item(Ins(f"v_mul_f32 v{A+k}, s{sC}, v{A+k}"), e0, d0 - 4))
            for k in range(4): sA.append(Item(Ins(f"v_mul_f32 v{B+k}, s{sC}, v{B+k}"), e0, d0 - 4))
            cv = [Item(Ins(x), e0, d0 - 3) for x in (
                  f"v_cvt_pk_bf16_f32 v{A}, v{A}, v{A+1}", f"v_cvt_pk_bf16_f32 v{B}, v{B}, v{B+1}",
                  f"v_cvt_pk_bf16_f32 v{A+1}, v{A+2}, v{A+3}", f"v_cvt_pk_bf16_f32 v{B+1}, v{B+2}, v{B+3}")]
            sA += cv
            sw = [Item(Ins(f"v_permlane16_swap_b32 v{A}, v{B}", cost=2), e0, d0 - 1, deps=cv, lag=2),
                  Item(Ins(f"v_permlane16_swap_b32 v{A+1}, v{B+1}", cost=2), e0, d0 - 1, deps=cv, lag=2)]
            sB_ += sw
            q = aQ + 4 * ((2 * dg + e) * 3 + rt)
            for dst, src, dep in ((q, A, 0), (q + 2, B, 0), (q + 1, A + 1, 1), (q + 3, B + 1, 1)):
                sC_.append(Item(Ins(f"v_accvgpr_write_b32 a{dst}, v{src}"), e0, d0, deps=[sw[dep]]))

def kread(fi, ds, T):
    return Ins(f"ds_read_b128 {ar(aFR + 4*(fi % 16))}, v{vK} offset:{T*8448 + ds*64}", tag=f"f{fi}")
def vread(fi, dt):
    b = aFR + 4 * (fi % 16)
    return [Ins(f"ds_read_b64_tr_b16 {ar(b,2)}, v{vV} offset:{dt*32}", tag=f"f{fi}x"),
            Ins(f"ds_read_b64_tr_b16 {ar(b+2,2)}, v{vV} offset:{8448 + dt*32}", tag=f"f{fi}")]

def rdl(s, f):
    if s == 0: return -1 if f < 4 else 2 * f - 6
    return 24 * s + min(3 * (f & 6) - 7 + (2 if f >= 2 else 0), 7)

def phase1_and_qk0(P):
    M = []
    for s in range(28):
        for f in range(8):
            hi, t = f >> 2, f & 3
            dg, slot = unit_of(s, hi); first = slot == 0
            F = 8 * s + f
            for rt in range(3):
                acc = vr(ACC1[dg] + (t * 3 + rt) * 4)
                M.append(Ins(f"{MF} {acc}, {vr(FR1 + 4*(F % 16))}, {Xf(slot, rt)}, {'0' if first else acc}"))
    n1 = len(M)
    for ds in range(8):
        for T in range(2):
            fi = ds * 2 + T
            for rt in range(3):
                acc = vr(Sreg(0, rt, T))
                M.append(Ins(f"{MF} {acc}, {ar(aFR + 4*(fi % 16))}, {Qf(rt, ds)}, {'0' if ds == 0 else acc}"))
    sync, reads, dma, epi, epi2, epi3, misc = [], [], [], [], [], [], []
    plan = {}
    xrd_at = {k: max(XNEED[k] - 1, 0) for k in range(14)}
    xw_at = {u: xrd_at[2 * u] for u in range(7)}
    last = -1
    for u in range(OPT["xfirst"], 7):
        last = max(xw_at[u] - OPT["xlead"], last + 1, 2 if u == 6 else 0)
        assert last < xw_at[u]
        plan[last] = x_dma(u)
    xfree = {u: xrd_at[2 * u + 1] + 2 for u in range(7)}
    if OPT["pretouch"]: plan.setdefault(OPT["ptat"], []).append([Ins(f"buffer_load_dword v{DUMMY+6}, v{vPT}, {srd(sPT)}, 0 offen", cost=2)])
    assert xfree[0] <= 2

    tiles = [(True, 1, KS, "K1", xfree[2]), (True, 2, 2 * KS, "K2", xfree[3]), (False, 0, VB + 3 * KS, "V0", xfree[4]), (True, 0, 0, "K0", xfree[6])]
    for i in range(16):
        t = tiles[i // 4]
        ne = OPT["kvn"]
        if i // 4 < ne: s0 = max(OPT["kvs"] + (i * OPT["kvsp"]) // 4, t[4])
        else: s0 = OPT["kvl"] + (i // 4 - ne)
        assert s0 >= t[4] and s0 < 24
        if i // 4 < ne: plan.setdefault(s0, []).extend(kv_piece(*t[:4], [i % 4]))
        elif i % 4 == 0: plan.setdefault(s0, []).extend(kv_piece(*t[:4], range(4)))
    plan[24] = kv_piece(False, 1, VB + 4 * KS, "V1", range(4))
    plan[26] = kv_piece(True, 3, 3 * KS, "K3", range(4)); plan[27] = kv_piece(False, 2, VB, "V2", range(4))
    for s in range(29):
        g0 = max(24 * s - 13, -1)
        if s < 28: tg = [f"wq{s}"] + [f"x{u}" for u in range(7) if xw_at[u] == s]
        else: tg = ["V0", "K1", "K0"]
        w = W(vm=tg, lg=f"w{8*s-1}" if s > 0 else None)
        xs = []
        if s in (0, 6, 14, 28): stamp(xs, "a")
        sync.append(Item([w, Ins("s_barrier")] + xs, g0, g0))
        if s < 28:
            def xrd(slot, d):
                u = slot >> 1
                for rt in range(3):
                    hi_ = u in (4, 5)
                    off = XU[u] - (XU[4] if hi_ else 0) + rt * 2048
                    reads.append(Item(Ins(f"ds_read_b128 {Xf(slot, rt)}, v{(vXr2 if hi_ else vXr) + (slot & 1)} offset:{off}", tag=f"xr{slot}"), g0, d))
            if s == 0: xrd(0, -1)
            for f in range(8):
                hi, t = f >> 2, f & 3
                F = 8 * s + f
                b = FR1 + 4 * (F % 16)
                off = (wslot(s) % 4) * 16384 + hi * 8192
                va = (vA if wslot(s) < 4 else vA2) + t
                reads.append(Item(Ins(f"ds_read_b64_tr_b16 {vr(b,2)}, v{va} offset:{off}", tag=f"w{F}x"), g0, rdl(s, f)))
                reads.append(Item(Ins(f"ds_read_b64_tr_b16 {vr(b+2,2)}, v{va} offset:{off+1024}", tag=f"w{F}"), g0, rdl(s, f)))
            for k in range(1, 14):
                if xrd_at[k] == s: xrd(k, 24 * s + 10)
            sync.append(Item(W(lg=f"w{8*s+1}"), 24 * s - 1, 24 * s - 1))
            sync.append(Item(W(lg=f"w{8*s+3}"), 24 * s + 5, 24 * s + 5))
        else:
            for fi in range(16):
                first = n1 + 3 * fi
                reads.append(Item(kread(fi, fi >> 1, fi & 1), max(first - 15, g0 + 1), first - (first - n1) % 6 - 6))
            for i in range(8):
                sync.append(Item(W(lg=f"f{2*i+1}"), n1 + 6 * i - 1, n1 + 6 * i - 1))
        grp = (wq_dma(s + NR - 1) if s + NR - 1 < 28 else []) + plan.get(s, [])
        if s == 0: spaced(dma, grp, 0, 10, 1.5, lo=-1)
        else: spaced(dma, grp, 24 * s - 12, 24 * s + 11, OPT["wqsp"])
    lim = {0: n1 - 2, 1: DONE[2] - 2, 2: n1 + 21, 3: n1 + 33}
    for dg in range(4):
        e0 = DONE[dg] + 2
        win = lambda u: (e0 + (0 if u < 3 else 3), lim[dg] - ((5 - u) * 8 if dg < 3 else (2 - u % 3) * 2 - (6 if u >= 3 else 0)))
        q_epilogue(dg, win, epi, epi2, epi3)
    misc.append(Item(Ins(f"v_mov_b32 v{vT}, 0x3f803f80"), n1 + 10, n1 + 44))
    for k in range(4): misc.append(Item(Ins(f"v_accvgpr_write_b32 a{aOnes+k}, v{vT}"), n1 + 10, n1 + 45))
    misc.append(Item(Ins(f"v_add_u32 v{vK}, s{sKx+1}, v{vK0}"), n1 + 43, n1 + 45))
    P += schedule(M, sync, [tighten(reads), tighten(dma), tighten(epi2), tighten(epi3), tighten(epi), tighten(misc)], name="p1", verbose=True)

def crossmax(r, t):
    return [f"v_mov_b32 v{t}, v{r}", "s_nop 1", f"v_permlane32_swap_b32 v{r}, v{t}", f"v_max_f32 v{r}, v{r}, v{t}",
            f"v_mov_b32 v{t}, v{r}", "s_nop 1", f"v_permlane16_swap_b32 v{r}, v{t}", f"v_max_f32 v{r}, v{r}, v{t}"]

def init_path(P):
    for fi in range(4): P.append(kread(16 + fi, fi >> 1, fi & 1))
    L(P, "s_barrier")
    inline(P, kv_group(True, f"s_mov_b32 m0, s{sKVm}", "Hm"))
    X = SPARE
    for rt in range(3):
        s = Sreg(0, rt, 0)
        L(P, f"v_max3_f32 v{X+rt}, v{s}, v{s+1}, v{s+2}\nv_max3_f32 v{X+rt}, v{X+rt}, v{s+3}, v{s+4}\n"
             f"v_max3_f32 v{X+rt}, v{X+rt}, v{s+5}, v{s+6}\nv_max_f32 v{X+rt}, v{X+rt}, v{s+7}")
    for sw in ("v_permlane32_swap_b32", "v_permlane16_swap_b32"):
        for rt in range(3): L(P, f"v_mov_b32 v{X+3+rt}, v{X+rt}")
        for rt in range(3): L(P, f"{sw} v{X+rt}, v{X+3+rt}")
        for rt in range(3): L(P, f"v_max_f32 v{X+rt}, v{X+rt}, v{X+3+rt}")
    for rt in range(3):
        for k in range(4): L(P, f"v_sub_f32 v{NEGM+4*rt+k}, 0, v{X+rt}")
    for rt in range(3):
        s = Sreg(0, rt, 0)
        for k in range(8): L(P, f"v_sub_f32 v{s+k}, v{s+k}, v{X+rt}")
        if rt == 0: inline(P, kv_group(False, f"s_mov_b32 m0, s{sM0V}", "Hm"))

def rare_path(R, site, buf):
    L(R, f"L_rare_{site}:\ns_nop 7\ns_nop 1")
    X = SPARE
    for rt in range(3):
        s = Sreg(buf, rt, 0)
        L(R, f"v_max3_f32 v{X}, v{s}, v{s+1}, v{s+2}\nv_max3_f32 v{X}, v{X}, v{s+3}, v{s+4}\n"
             f"v_max3_f32 v{X}, v{X}, v{s+5}, v{s+6}\nv_max3_f32 v{X}, v{X}, v{s+7}, 0")
        L(R, "\n".join(crossmax(X, X + 1)))
        for k in range(8): L(R, f"v_sub_f32 v{s+k}, v{s+k}, v{X}")
        for k in range(4): L(R, f"v_sub_f32 v{NEGM+4*rt+k}, v{NEGM+4*rt+k}, v{X}")
        L(R, f"v_sub_f32 v{X+1}, 0, v{X}\nv_exp_f32 v{X+1}, v{X+1}\ns_nop 0")
        for ks in range(7):
            for k in range(8): L(R, f"v_mul_f32 v{OB+(ks*3+rt)*8+k}, v{OB+(ks*3+rt)*8+k}, v{X+1}")
        for a in [aO7 + rt * 8 + k for k in range(8)] + [aL + 4 * rt + k for k in range(4)]:
            L(R, f"v_accvgpr_read_b32 v{X+2}, a{a}\nv_mul_f32 v{X+2}, v{X+2}, v{X+1}\nv_accvgpr_write_b32 a{a}, v{X+2}")
    L(R, f"s_nop 1\ns_branch L_ret_{site}")

def iteration(P, j):
    SG = OPT["stag"] * G.var
    p = j & 1
    last = (j == 15)
    site = {0: "i0", 13: "i13", 14: "i14"}.get(j, "A" if j & 1 else "B") + f"_{G.var}"
    FK = 16 + 32 * j
    FV = FK + 16
    FN = FV + 16
    M = []
    if not last:
        for ds in range(8):
            for T in range(2):
                for rt in range(3):
                    acc = vr(Sreg(1 - p, rt, T))
                    c = vr(NEGM + 4 * rt) if ds == 0 else acc
                    M.append(Ins(f"{MF} {acc}, {ar(aFR + 4*((FK + 2*ds + T) % 16))}, {Qf(rt, ds)}, {c}"))
    nq = len(M)
    for rt in range(3):
        c = "0" if j == 0 else ar(aL + 4 * rt)
        M.append(Ins(f"{MF} {ar(aL+4*rt)}, {ar(aOnes)}, {vr(Sreg(p, rt, 0))}, {c}"))
    n0 = len(M)
    for dt in range(16):
        for rt in range(3):
            c = "0" if j == 0 else Oacc(dt, rt)
            M.append(Ins(f"{MF} {Oacc(dt, rt)}, {ar(aFR + 4*((FV + dt) % 16))}, {vr(Sreg(p, rt, 0))}, {c}"))
    n = len(M)
    sync, reads, soft, cvts, dma, ring, chk = [], [], [], [], [], [], []
    def exps(rt): return [Ins(f"v_exp_f32 v{Sreg(p,rt,0)+k}, v{Sreg(p,rt,0)+k}", cost=2) for k in range(8)]
    def cvs(rt): return [Ins(f"v_cvt_pk_bf16_f32 v{Sreg(p,rt,0)+k}, v{Sreg(p,rt,0)+2*k}, v{Sreg(p,rt,0)+2*k+1}") for k in range(4)]
    npre = 0
    if not last:
        for rt in range(3):
            dl = nq - 3 + rt
            ex = [Item(x, 0, dl - 1) for x in exps(rt)]
            soft += ex; cvts += [Item(x, 0, dl, deps=ex[2*k:2*k+2]) for k, x in enumerate(cvs(rt))]
        for fi in range(4, 16):
            first = 3 * fi
            reads.append(Item(kread(FK + fi, fi >> 1, fi & 1), max(first - 15, 0), first - first % 6 - 6))
        for i in range(8):
            sync.append(Item(W(lg=f"f{FK+2*i+1}"), 6 * i - 1, 6 * i - 1))
    else:
        P += exps(0) + exps(1) + cvs(0) + [W(vm=0), Ins("s_barrier")]
        npre = 4
        for dt in range(npre): P += vread(FV + dt, dt)
        P += exps(2) + cvs(1) + cvs(2) + [Ins("s_nop 0")]
    for dt in range(npre, 16):
        first = n0 + 3 * dt
        wpos = first - (3 * dt) % 6 - 1
        for x in vread(FV + dt, dt): reads.append(Item(x, max(first - 16, -1), max(wpos - 5, -1)))
    for i in range(8):
        sync.append(Item(W(lg=f"f{FV+2*i+1}"), n0 + 6 * i - 1, n0 + 6 * i - 1))
    a, b, c = SPARE, SPARE + 1, SPARE + 2
    if not last:
        gbar = nq + 1
        d0 = gbar + 2 + SG
        if j < 14:
            tgt = {0: ["V1", "K2"], 1: ["V2", "K3"], 2: "Hm"}.get(j, f"H{j-3}")
            if 1 <= j <= 3: tgt = 16
            sync.append(Item([W(vm=tgt), Ins("s_barrier")], gbar, gbar))
            for fi in range(4):
                reads.append(Item(kread(FN + fi, fi >> 1, fi & 1), n - 11, n - 6))
            ring.append(Item(Ins(f"s_add_u32 s{sTmp}, s{sKx+1-p}, {KS}"), nq, n - 14))
            ring.append(Item([Ins(f"s_cmp_eq_u32 s{sTmp}, {4*KS}"), Ins(f"s_cselect_b32 s{sKx+p}, 0, s{sTmp}")], nq, n - 13))
            ring.append(Item(Ins(f"v_add_u32 v{vK}, s{sKx+p}, v{vK0}"), nq, n - 12))
        if j < 13:
            spaced(dma, kv_group(True, f"s_add_u32 m0, s{sKx+1-p}, s{sKVm}", f"H{j}") + kv_group(False, f"s_add_u32 m0, s{sVx+1-p}, s{sKVm}", f"H{j}"),
                   d0, n - 2, 5, lo=nq - 6)
        e = d0 + 5 * 4 + 1
        ring.append(Item(Ins(f"s_add_u32 s{sTmp}, s{sVx+p}, {KS}"), e, n - 2))
        ring.append(Item([Ins(f"s_cmp_eq_u32 s{sTmp}, {VB+5*KS}"), Ins(f"s_cselect_b32 s{sVx+1-p}, {VB}, s{sTmp}")], e, n - 2))
        vlast = n0 + 3 * 14 - 1 - 5
        ring.append(Item(Ins(f"v_add_u32 v{vV}, s{sVx+1-p}, v{vV0}"), vlast + 1, n - 1))
        s = SB[1 - p]
        e = nq + 6
        chk.append(Item(Ins(f"v_max3_f32 v{vMx}, v{s}, v{s+1}, v{s+2}"), e, n - 3))
        for k in range(3, 23, 2): chk.append(Item(Ins(f"v_max3_f32 v{vMx}, v{vMx}, v{s+k}, v{s+k+1}"), e, n - 3))
        chk.append(Item(Ins(f"v_max_f32 v{vMx}, v{vMx}, v{s+23}"), e, n - 3))
        chk.append(Item(Ins(f"v_cmp_lt_f32 vcc, s{sT}, v{vMx}"), e, n - 2))
    if j == 0:
        txt = f"""
s_lshl_b32 s{sTmp2}, s3, 12
s_lshl_b32 s{sHm}, s{sB}, 3
s_add_u32 s{sTmp2}, s{sTmp2}, s{sHm}
v_lshlrev_b32 v{a}, 12, v0
v_add_u32 v{a}, s{sTmp2}, v{a}
v_mov_b32 v{b}, 1
buffer_atomic_add v{b}, v{a}, {srd(sDbg)}, 0 offen sc1
"""
        for x in txt.strip().split("\n"): dma.append(Item(Ins(x, cost=2 if x.startswith("buffer") else 1), n - 12, n - 1))
    if j == 13:
        txt = f"""
v_lshrrev_b32 v{a}, 1, v0
v_lshrrev_b32 v{b}, 4, v0
v_xor_b32 v{a}, v{a}, v{b}
v_and_b32 v{a}, 3, v{a}
v_and_b32 v{c}, 1, v0
v_lshl_or_b32 v{a}, v{a}, 1, v{c}
v_lshrrev_b32 v{b}, 3, v0
v_mul_u32_u24 v{b}, 896, v{b}
v_lshl_add_u32 v{vD}, v{a}, 4, v{b}
v_add_u32 v{vD+1}, {8*896-1024}, v{vD}
v_add_u32 v{vD+2}, {16*896-2048}, v{vD}
v_add_u32 v{vD+3}, {24*896-3072}, v{vD}
s_lshl_b32 s{sCg}, s{sRot}, 7
s_add_u32 s{sCg}, s{sCg}, s{sWoW}
s_mul_i32 s{sWqOff}, s{sRd}, {64*896}
s_xor_b32 s{sSt}, s{sRd}, 1
s_mul_i32 s{sWqOff+1}, s{sSt}, {64*896}
s_xor_b32 s{sSt}, s{sRd}, 2
s_mul_i32 s{sWqOff+2}, s{sSt}, {64*896}
s_xor_b32 s{sSt}, s{sRd}, 3
s_mul_i32 s{sWqOff+3}, s{sSt}, {64*896}
v_bfe_u32 v{a}, v0, 2, 3
v_lshlrev_b32 v{b}, 7, v{a}
v_and_b32 v{c}, 3, v0
v_lshl_add_u32 v{b}, v{c}, 3, v{b}
v_lshrrev_b32 v{c}, 5, v0
v_lshl_add_u32 v{b}, v{c}, 10, v{b}
v_lshrrev_b32 v{a}, 1, v{a}
s_lshl_b32 s{sTmp2}, s{sU}, 1
v_xor_b32 v{a}, s{sTmp2}, v{a}
v_xor_b32 v{c}, 1, v{a}
v_lshl_add_u32 v{a}, v{a}, 5, v{b}
v_lshl_add_u32 v{c}, v{c}, 5, v{b}
s_lshl_b32 s{sTmp2}, s{sU}, 13
v_add_u32 v{vA}, s{sTmp2}, v{a}
v_add_u32 v{vA+1}, s{sTmp2}, v{c}
s_xor_b32 s{sTmp2}, s{sTmp2}, 8192
v_add_u32 v{vA+2}, s{sTmp2}, v{a}
v_add_u32 v{vA+3}, s{sTmp2}, v{c}
"""
        for x in txt.strip().split("\n"): dma.append(Item(Ins(x), nq, n - 1))
    if j == 14:
        txt = f"""
s_mul_i32 s{sSt}, s3, {21*8192}
s_lshl_b32 s{sTmp2}, s{sH}, 13
s_add_u32 s{sHo}, s{sSt}, s{sTmp2}
s_lshl_b32 s{sTmp2}, s{sH}, 10
s_add_u32 s{sSt}, s{sSt}, s{sTmp2}
s_lshl_b32 s{sHm}, s{sB}, 3
v_lshlrev_b32 v{SPARE+10}, 12, v0
v_add_u32 v{SPARE+10}, s{sHm}, v{SPARE+10}
buffer_load_dword v{SPARE+11}, v{SPARE+10}, {srd(sDbg)}, 0 offen sc1
"""
        for i in range(7):
            txt += f"s_add_u32 s{sTmp2}, s{sTmp2}, 1024\ns_and_b32 s{sTmp2}, s{sTmp2}, 0x1fff\ns_add_u32 s{sSrc+i}, s{sTmp2}, s{sHo}\n"
        txt += f"""v_lshrrev_b32 v{a}, 4, v0
v_bfe_u32 v{b}, v0, 2, 2
v_cmp_eq_u32 s[{sMask}:{sMask+1}], v{a}, v{b}
v_and_b32 v{a}, 1, v0
v_lshlrev_b32 v{a}, 4, v{a}
v_mov_b32 v{b}, 0x3f80
v_lshlrev_b32 v{a}, v{a}, v{b}
v_cndmask_b32 v{a}, 0, v{a}, s[{sMask}:{sMask+1}]
v_and_b32 v{b}, 2, v0
v_cmp_eq_u32 s[{sMask}:{sMask+1}], 0, v{b}
v_accvgpr_write_b32 a{aSel+2}, 0
v_accvgpr_write_b32 a{aSel+3}, 0
v_cndmask_b32 v{b}, 0, v{a}, s[{sMask}:{sMask+1}]
v_cndmask_b32 v{c}, v{a}, 0, s[{sMask}:{sMask+1}]
v_accvgpr_write_b32 a{aSel+4}, 0
v_accvgpr_write_b32 a{aSel+5}, 0
v_accvgpr_write_b32 a{aSel}, v{b}
v_accvgpr_write_b32 a{aSel+1}, v{c}
v_accvgpr_write_b32 a{aSel+6}, v{b}
v_accvgpr_write_b32 a{aSel+7}, v{c}
"""
        for x in txt.strip().split("\n"): dma.append(Item(Ins(x, cost=2 if x.startswith("buffer") else 1), nq, n - 1))
    if last:
        spaced(dma, wo_dma(0) + wo_dma(1) + wo_dma(2) + wo_dma(3), 1 + G.var, n - 2, 3)
        for rt in range(3):
            chk.append(Item(Ins(f"v_accvgpr_read_b32 v{SPARE+4+2*rt}, a{aL+4*rt}"), 12, n - 1))
            chk.append(Item(Ins(f"v_rcp_f32 v{SPARE+4+2*rt}, v{SPARE+4+2*rt}", cost=2), 12, n - 1))
        txt = f"""
v_lshlrev_b32 v{vFl}, 2, v0
s_lshl_b32 s{sTmp}, s{sH}, 2
v_lshlrev_b32 v{vFs}, 12, v0
v_add_u32 v{vFs}, s{sTmp}, v{vFs}
v_readfirstlane_b32 s{sOk}, v{SPARE+11}
s_mul_i32 s{sTmp}, s3, 24576
s_add_u32 s{sTmp}, s{sTmp}, {OXB}
v_add_u32 v{vK}, s{sTmp}, v{vL16}
s_xor_b32 s{sTmp}, s3, 1
s_mul_i32 s{sTmp}, s{sTmp}, 24576
s_add_u32 s{sTmp}, s{sTmp}, {OXB}
v_add_u32 v{vMx}, s{sTmp}, v{vL16}
"""
        for x in txt.strip().split("\n"): ring.append(Item(Ins(x), 0, n - 1))
    P += schedule(M, sync, [tighten(reads), tighten(soft), tighten(cvts), tighten(dma), tighten(ring), tighten(chk)],
                  name=f"it{j}", verbose=(j in (1, 13, 14, 15)))
    if not last:
        L(P, f"s_cbranch_vccnz L_rare_{site}\nL_ret_{site}:")

def Ofrag(part, ks, rt):
    if ks < 7: return vr(OB + (ks * 3 + rt) * 8 + 4 * part)
    return vr(NEGM + 4 * rt) if part == 0 else ar(aO7 + rt * 8)

def transition(P):
    vx, vy = vK, vMx
    L(P, f"s_cmp_lt_u32 s{sOk}, 8\ns_cbranch_scc1 L_clr_wait\nL_clr_ok:\ns_barrier\ns_nop 1")
    for ks in range(8):
        for rt in range(3):
            rl = SPARE + 4 + 2 * rt
            if ks < 7:
                b = OB + (ks * 3 + rt) * 8; dst = b
            else:
                b = SB[0] + rt * 8; dst = NEGM + 4 * rt
                for k in range(8): L(P, f"v_accvgpr_read_b32 v{b+k}, a{aO7+rt*8+k}")
            for k in range(4):
                L(P, f"v_pk_mul_f32 {vr(b+2*k,2)}, {vr(b+2*k,2)}, {vr(rl,2)} op_sel_hi:[1,0]")
            for k in range(4):
                L(P, f"v_cvt_pk_bf16_f32 v{dst+k}, v{b+2*k}, v{b+2*k+1}")
            L(P, f"ds_write_b128 v{vx}, {vr(dst)} offset:{(ks*3+rt)*1024}")
    L(P, "s_waitcnt lgkmcnt(0)\ns_barrier")
    for ks in range(8):
        for rt in range(3):
            P.append(Ins(f"ds_read_b128 {Ofrag(1, ks, rt)}, v{vy} offset:{(ks*3+rt)*1024}", tag=f"ox{ks}"))
        if ks == 3: P.append(W(lg=12))

def publish(val):
    return [[Ins(f"v_mov_b32 v{vT}, {val}")], [Ins(f"buffer_store_dword v{vT}, v{vFs}, {srd(sFl)}, 0 offen sc1", cost=2)]]
def unit_loads(k, dst, voff):
    return [Ins(f"buffer_load_dwordx4 {dst(i)}, v{voff}, {srd(sWs)}, s{sSrc+i} offen sc1", cost=2, tag=f"u{k}s{i}") for i in range(7)]

def phase3(P):
    M = []
    F0 = 16 + 32 * 16
    for sg in range(28):
        si, i = sg >> 2, sg & 3
        for f in range(8):
            part, kk, tt = f >> 2, (f >> 1) & 1, f & 1
            for rt in range(3):
                acc = vr(SB[si & 1] + rt * 8 + tt * 4)
                c = "0" if (i == 0 and part == 0 and kk == 0) else acc
                M.append(Ins(f"{MF} {acc}, {ar(aFR + 4*((F0 + 8*sg + f) % 16))}, {Ofrag(part, 2*i+kk, rt)}, {c}"))
    n = len(M)
    sync, reads, dma, epi, xch = [], [], [], [], []
    for s in range(28):
        g0 = max(24 * s - 13, -1)
        if s % 2 == 0: sync.append(Item([W(vm=f"wo{s+1}", lg=0), Ins("s_barrier")], g0, g0))
        else: sync.append(Item(W(lg=f"w{F0+8*s-1}"), g0, g0))
        if s % 4 == 0 and s > 0:
            for k in range(4): reads.append(Item(Ins(f"v_xor_b32 v{vA+k}, 0x10000, v{vA+k}"), g0 - 4, g0 - 1))
        for f in range(8):
            part, kk, tt = f >> 2, (f >> 1) & 1, f & 1
            F = F0 + 8 * s + f
            b = aFR + 4 * (F % 16)
            off = (s % 4) * 16384 + kk * 4096
            reads.append(Item(Ins(f"ds_read_b64_tr_b16 {ar(b,2)}, v{vA+2*part+tt} offset:{off}", tag=f"w{F}x"), g0, rdl(s, f)))
            reads.append(Item(Ins(f"ds_read_b64_tr_b16 {ar(b+2,2)}, v{vA+2*part+tt} offset:{off+2048}", tag=f"w{F}"), g0, rdl(s, f)))
        sync.append(Item(W(lg=f"w{F0+8*s+1}"), 24 * s - 1, 24 * s - 1))
        sync.append(Item(W(lg=f"w{F0+8*s+3}"), 24 * s + 5, 24 * s + 5))
        if s == 0: spaced(dma, wo_dma(4) + wo_dma(5) + wo_dma(6) + wo_dma(7), 1, 34, 2.2)
        elif s % 2 == 0 and s + 6 < 28: spaced(dma, wo_dma(s + 6) + wo_dma(s + 7), 24 * s - 12, 24 * s + 34, 6)
    sync.append(Item(W(lg=0), 24 * 28 - 13, 24 * 28 - 13))
    tail = []
    for si in range(7):
        e0 = 96 * (si + 1) + 6
        for rt in range(3):
            b = SB[si & 1] + rt * 8
            idx = 3 * si + rt
            own = SPARE + 4 * (idx >> 3)
            es = 96 * (si + 1) + 15 + 24 * rt
            seq = [[Ins(f"s_cmp_eq_u32 s{sH}, {idx & 7}"), Ins(f"s_cselect_b64 s[{sMask}:{sMask+1}], -1, 0")],
                   [Ins(f"s_and_b32 s{sTmp}, s{sMask}, 0x10000000")], [Ins(f"s_add_u32 s{sTmp}, s{sTmp}, s{sSt}")],
                   [Ins(f"s_add_u32 s{sSt}, s{sSt}, 8192")]]
            seq += [[Ins(f"v_cvt_pk_bf16_f32 v{b+k}, v{b+2*k}, v{b+2*k+1}")] for k in range(4)]
            st = [Ins(f"buffer_store_dwordx4 {vr(b)}, v{vL16}, {srd(sWs)}, s{sTmp} offen sc1", cost=2, tag=f"st{si}")]
            cap = [[Ins(f"v_cndmask_b32 v{own+k}, v{own+k}, v{b+k}, s[{sMask}:{sMask+1}]")] for k in range(4)]
            if si < 6:
                for x in seq: epi.append(Item(x, e0, es - 1))
                epi.append(Item(st, es, es + 1))
                for x in cap: epi.append(Item(x, e0, es + 12))
            else:
                tail += seq + [st] + cap
    gA = 96 * 5 + 2
    sync.append(Item(W(vm="st2"), gA - 46, gA - 46))
    pa = publish(1)
    xch.append(Item(pa[0], gA - 50, gA - 46)); xch.append(Item(pa[1], gA - 45, gA - 43))
    if OPT["k0early"]:
        xch.append(Item(Ins(f"buffer_load_dword v{vPoll}, v{vFl}, {srd(sFl)}, 0 offen sc1", cost=2, tag="fA"), gA + 60, gA + 62))
        sync.append(Item(W(vm="fA"), n - 4, n - 4))
        xch.append(Item(Ins(f"v_cmp_le_u32 vcc, 1, v{vPoll}"), n - 4, n - 3))
    Q = schedule(M, sync, [tighten(reads), tighten(dma), tighten(epi), tighten(xch)], name="p3", verbose=True)
    x = OPT["p3x"]
    if "b" in x: Q = [i for i in Q if i.kind != "bar"]
    P += Q
    L(P, "s_nop 2")
    for x in tail: P += x
    L(P, f"s_mov_b32 s{sOk}, vcc_lo" if OPT["k0early"] else f"s_mov_b32 s{sOk}, 0")
    stamp(P, "mt")
    P.append(W(vm="st5"))
    for x in publish(2): P += x
    P.append(Ins(f"buffer_load_dword v{vPoll}, v{vFl}, {srd(sFl)}, 0 offen sc1", tag="fB"))
    if OPT["k0early"]: P += unit_loads(0, lambda i: ar(aU0 + 4 * i), vL16)
    P.append(W(vm="st6"))
    for x in publish(3): P += x
    stamp(P, "t")

def poll(P, name, thr):
    L(P, f"""
L_{name}:
v_cmp_le_u32 vcc, {thr}, v{vPoll}
s_nop 1
s_cmp_eq_u32 vcc_lo, 0xff
s_cbranch_scc1 L_{name}_ok
""")
    n0 = len(P)
    L(P, f"""
s_sleep {OPT["sleep"]}
buffer_load_dword v{vPoll}, v{vFl}, {srd(sFl)}, 0 offen sc1
s_waitcnt vmcnt(0)
s_branch L_{name}
""")
    for i in P[n0:]: i.kind = "raw"
    L(P, f"L_{name}_ok:")

def reduce_unit(P, k, src, vout):
    A = SB[1] + 8 * k
    own = vr(SPARE + 4 * k)
    L(P, f"{MF} {vr(A)}, {ar(aSel)}, {own}, 0\n{MF} {vr(A+4)}, {ar(aSel+4)}, {own}, 0")
    L(P, f"""
s_add_u32 s{sTmp}, s{sH}, {8*k}
s_mul_i32 s{sTmp2}, s{sTmp}, 11
s_lshr_b32 s{sTmp2}, s{sTmp2}, 5
s_mul_i32 s{sCg}, s{sTmp2}, 3
s_sub_u32 s{sTmp}, s{sTmp}, s{sCg}
s_mul_i32 s{sTmp}, s{sTmp}, {16*896}
s_add_u32 s{sTmp2}, s{sTmp2}, s{sRot}
s_sub_u32 s{sCg}, s{sTmp2}, 7
s_cselect_b32 s{sTmp2}, s{sTmp2}, s{sCg}
s_lshl_b32 s{sTmp2}, s{sTmp2}, 7
s_add_u32 s{sTmp}, s{sTmp}, s{sTmp2}
""")
    for i in range(7):
        P.append(W(vm=f"u{k}s{i}"))
        L(P, f"{MF} {vr(A)}, {ar(aSel)}, {src(i)}, {vr(A)}\n{MF} {vr(A+4)}, {ar(aSel+4)}, {src(i)}, {vr(A+4)}")
    L(P, "s_nop 6")
    for r in range(4): L(P, f"v_cvt_pk_bf16_f32 v{A+r}, v{A+2*r}, v{A+2*r+1}")
    L(P, f"s_nop 1\nv_permlane16_swap_b32 v{A}, v{A+2}\nv_permlane16_swap_b32 v{A+1}, v{A+3}")
    L(P, f"buffer_store_dwordx4 {vr(A)}, v{vout}, {srd(sOut)}, s{sTmp} offen {OPT['out_flag']}")

def final(P):
    vo, v1, v2 = 10, 11, 12
    U1, U2 = 88, 116
    L(P, f"""
v_add_u32 v{v1}, 0x10000, v{vL16}
v_add_u32 v{v2}, 0x20000, v{vL16}
v_and_b32 v{vo}, 15, v0
v_mul_u32_u24 v{vo}, 896, v{vo}
v_bfe_u32 v13, v0, 4, 1
v_lshl_add_u32 v{vo}, v13, 5, v{vo}
v_lshrrev_b32 v13, 5, v0
v_lshl_add_u32 v{vo}, v13, 4, v{vo}
s_mul_i32 s{sTmp}, s{sU+1}, {48*896}
s_lshl_b32 s{sTmp2}, s{sU}, 6
s_add_u32 s{sTmp}, s{sTmp}, s{sTmp2}
v_add_u32 v{vo}, s{sTmp}, v{vo}
""")
    P.append(W(vm="fB"))
    poll(P, "pB", 2)
    stamp(P, "mt")
    L(P, f"s_cmp_eq_u32 s{sOk}, 0xff\ns_cbranch_scc1 L_have0\ns_waitcnt vmcnt(0)")
    P += unit_loads(0, lambda i: ar(aU0 + 4 * i), vL16)
    L(P, "L_have0:")
    P += unit_loads(1, lambda i: vr(U1 + 4 * i), v1)
    reduce_unit(P, 0, lambda i: ar(aU0 + 4 * i), vo)
    L(P, f"s_cmp_gt_u32 s{sH}, 4\ns_cbranch_scc1 L_two\ns_cmp_ge_u32 s{sH}, 2\ns_cselect_b32 s{sOk}, 3, 2")
    poll(P, "pC", f"s{sOk}")
    stamp(P, "t")
    ns = G.nstamp
    P += unit_loads(2, lambda i: vr(U2 + 4 * i), v2)
    reduce_unit(P, 1, lambda i: vr(U1 + 4 * i), vo)
    reduce_unit(P, 2, lambda i: vr(U2 + 4 * i), vo)
    L(P, "s_branch L_fin\nL_two:")
    if "t" in OPT["stamps"]: G.nstamp = ns - 1; stamp(P, "t")
    P.append(Ins("s_waitcnt vmcnt(1)"))
    Q = []
    reduce_unit(Q, 1, lambda i: vr(U1 + 4 * i), vo)
    P += [i for i in Q if i.txt != "WAIT"]
    L(P, "L_fin:")
    if OPT["stamps"]:
        stamp(P, OPT["stamps"][0])
        ns = G.nstamp
        L(P, f"""
s_waitcnt vmcnt(0)
s_cmp_lg_u32 s3, 0
s_cbranch_scc1 L_end
s_mov_b32 s{sWs}, s18
s_and_b32 s{sWs+1}, s19, 0xffff
s_mov_b32 s{sWs+2}, 0x10000000
s_mul_i32 s{sTmp}, s2, {ns*16}
s_add_u32 s{sTmp}, s{sTmp}, 0x8000000
v_mov_b32 v10, s{sTmp}
s_mov_b64 exec, 1
v_mov_b32 v17, 0
v_mov_b32 v19, 0
""")
        for j in range(ns):
            L(P, f"v_mov_b32 v16, s{STAMPS[j]}\nv_mov_b32 v18, s{STAMPS[j]+1}\n"
                 f"buffer_store_dwordx4 v[16:19], v10, {srd(sWs)}, 0 offen offset:{16*j}\ns_nop 1")

def clr_wait(R):
    L(R, f"""
L_clr_wait:
s_sleep 4
buffer_load_dword v{SPARE+11}, v{SPARE+10}, {srd(sDbg)}, 0 offen sc1
s_waitcnt vmcnt(0)
v_readfirstlane_b32 s{sOk}, v{SPARE+11}
s_nop 1
s_cmp_lt_u32 s{sOk}, 8
s_cbranch_scc1 L_clr_wait
s_branch L_clr_ok
""")

def main():
    rare = []; errs = []; parts = []
    nvar = OPT["nvar"]
    for var in range(nvar):
        G.var = var; G.nstamp = 0
        P = []
        prologue(P)
        phase1_and_qk0(P)
        stamp(P, "m")
        init_path(P)
        marks = []
        for j in range(16):
            marks.append(len(P))
            iteration(P, j)
            if j & 1 == 0 and 2 <= j <= 12:
                L(P, f"s_cmp_lt_u32 s{sKo}, {18*16384}\ns_cbranch_scc1 L_loop_{var}")
        nsh = len(P)
        G.var = 0
        stamp(P, "m")
        transition(P)
        stamp(P, "m")
        phase3(P)
        final(P)
        resolve_waits(P)
        errs += check(P, f"main{var}")
        body = [i.txt for i in P[marks[1]:marks[3]]]
        for j in range(3, 13, 2):
            assert [i.txt for i in P[marks[j]:marks[j+2]]] == body, f"iteration pair {j} differs"
        parts.append((P[:marks[0]], P[marks[0]:marks[1]] + [Ins(".p2align 6"), Ins(f"L_loop_{var}:")] + P[marks[1]:marks[3]] + P[marks[13]:nsh], P[nsh:]))
        R = []
        for site, buf in (("i0", 1), ("A", 0), ("B", 1), ("i13", 0), ("i14", 1)): rare_path(R, f"{site}_{var}", buf)
        errs += check(R, "rare")
        rare += R
    clr_wait(rare)
    out = list(parts[0][0])
    if nvar > 1:
        for k in (0, 2): assert [i.txt for i in parts[0][k]] == [i.txt for i in parts[1][k]]
        L(out, f"s_cmp_eq_u32 s{sU}, 1\ns_cbranch_scc1 L_var_1")
        out += parts[0][1]; L(out, "s_branch L_shared\n.p2align 6\nL_var_1:"); out += parts[1][1]; L(out, "L_shared:")
    else: out += parts[0][1]
    out += parts[0][2]
    for e in errs[:30]: print("HAZARD", e, file=sys.stderr)
    txt = f"""; fused GQA block: Q projection, attention, output projection, cross-workgroup reduce
; @launch grid=(256,1,1) block=(256,1,1) lds=163840
.amdgcn_target "amdgcn-amd-amdhsa--gfx950"
.text
.globl {KN}
.p2align 8
.type {KN},@function
{KN}:
"""
    txt += "\n".join(i.txt for i in out)
    txt += "\nL_end:\ns_endpgm\n"
    txt += "\n".join(i.txt for i in rare)
    txt += f"""
s_endpgm
.section .rodata,"a"
.p2align 6
.amdhsa_kernel {KN}
  .amdhsa_next_free_vgpr 512
  .amdhsa_next_free_sgpr 102
  .amdhsa_accum_offset 256
  .amdhsa_group_segment_fixed_size 0
  .amdhsa_kernarg_size 64
  .amdhsa_user_sgpr_count 2
  .amdhsa_user_sgpr_kernarg_segment_ptr 1
  .amdhsa_system_sgpr_workgroup_id_x 1
  .amdhsa_float_denorm_mode_32 3
.end_amdhsa_kernel
"""
    open(sys.argv[1], "w").write(txt)
    print("instructions:", len(out), "stamps:", G.nstamp, "hazards:", len(errs), file=sys.stderr)

main()
```

```python
import re, sys

class Ins:
    def __init__(self, txt, cost=1, tag=None, lg=None, vm=None):
        self.txt = txt; self.cost = cost; self.tag = tag
        self.lg = lg; self.vm = vm
        self.kind = classify(txt)
    def __repr__(self): return self.txt

TRANS = ("v_exp_f32", "v_rcp_f32", "v_log_f32", "v_rsq_f32", "v_sqrt_f32")
def classify(t):
    m = t.split()[0] if t.strip() else ""
    if m.endswith(":"): return "label"
    if m.startswith(";") or m.startswith("."): return "raw"
    if m.startswith("v_mfma"): return "mfma"
    if m in TRANS: return "trans"
    if m.startswith("v_"): return "valu"
    if m.startswith("ds_"): return "ds"
    if m.startswith("buffer_") or m.startswith("global_"): return "vmem"
    if m == "s_waitcnt" or m == "WAIT": return "wait"
    if m == "s_barrier": return "bar"
    if m in ("s_load_dwordx16", "s_load_dwordx2", "s_load_dwordx4", "s_memtime", "s_memrealtime", "s_load_dword", "s_load_dwordx8"): return "smem"
    if m.startswith("s_cbranch") or m in ("s_branch", "s_call_b64", "s_setpc_b64"): return "br"
    if m.startswith("s_"): return "salu"
    raise ValueError("unknown instr " + t)

def W(lg=None, vm=None):
    return Ins("WAIT", lg=lg, vm=vm)

class Item:
    def __init__(self, ins, e, d, cost=None, deps=(), lag=1):
        self.deps = list(deps); self.at = None; self.lag = lag
        if not isinstance(ins, list): ins = [ins]
        self.ins = [i if isinstance(i, Ins) else Ins(i) for i in ins]
        self.e = e; self.d = d
        self.cost = cost if cost is not None else sum(i.cost for i in self.ins)

def iclass(it):
    ks = {i.kind for i in it.ins}
    if ks <= {"salu", "wait", "bar", "smem", "br", "label"}: return "s"
    if ks == {"ds"}: return "d"
    if ks == {"vmem"}: return "v"
    assert ks <= {"valu", "trans"}, it.ins
    return "a"

def schedule(mfmas, sync, streams, name="", verbose=False, blobs=None):
    n = len(mfmas)
    out = []
    heads = [0] * len(streams)
    over = 0
    pre = {}
    for it in sync:
        assert -1 <= it.e < n, (name, it.e, n)
        pre.setdefault(it.e, []).append(it)
    overs = []
    for g in range(-1, n):
        if g >= 0: out.append(mfmas[g])
        if g == -1:
            fx = pre.get(g, [])
            for it in fx:
                if any(i.kind == "bar" for i in it.ins): out.extend(it.ins); over += it.cost
            while True:
                best = None
                for si, st in enumerate(streams):
                    if heads[si] < len(st) and st[heads[si]].d <= g:
                        best = si; break
                if best is None: break
                it = streams[best][heads[best]]; heads[best] += 1; it.at = g
                out.extend(it.ins); over += it.cost
            for it in fx:
                if not any(i.kind == "bar" for i in it.ins): out.extend(it.ins); over += it.cost
            overs.append((g, over))
            continue
        lead, mem, val, trail = [], [], [], []
        room = 2
        for it in pre.get(g, []):
            for i in it.ins:
                if lead: room -= 1
                lead.append(i)
        pos = {}
        dls = []
        for si, st in enumerate(streams):
            for it in st[heads[si]:heads[si] + 40]:
                if iclass(it) in "dv" and it.d <= g + 30: dls.append(it.d)
        dls.sort()
        press = any(k + 1 > d - g + 1 for k, d in enumerate(dls))
        while True:
            best = None
            for si, st in enumerate(streams):
                if heads[si] >= len(st): continue
                it = st[heads[si]]
                if it.e > g: continue
                if any(x.at is None or (x.at + it.lag > g and it.d > g) for x in it.deps): continue
                c = iclass(it); p0 = pos.get(si, -1)
                forced = it.d <= g
                if c == "s":
                    hasv = any(i.kind == "vmem" for i in mem)
                    if not lead and p0 <= 0 and not hasv: where, cost = 0, it.cost - 1
                    elif lead and not mem and not val and not trail: where, cost = 0, it.cost
                    else: where, cost = 3, it.cost
                elif c == "d":
                    where, cost = 1, 1
                    if "ds_write" in it.ins[0].txt: cost = 2
                    if mem or p0 > 1 or trail: cost = 3
                    if press and len(mem) == 1 and "b64" in mem[0].txt and "b64" in it.ins[0].txt and p0 <= 1 and not val and not trail and room >= 1:
                        cost = 2; forced = True
                elif c == "v":
                    where, cost = 1, 2
                    if mem or p0 > 1 or val or trail or any(i.kind == "salu" for i in lead): cost = 4
                else:
                    where, cost = 2, it.cost
                    if p0 > 2: where = 3
                if cost <= room or forced:
                    cp = {"d": 0, "v": 0, "s": 1, "a": 2}[c]
                    if c == "a" and it.cost == 2 and "swap" in it.ins[0].txt: cp = 1.5
                    if c == "s" and cost > 0 and it.d > g + 3: cp = 3
                    key = (0, cp, it.d, si) if not forced else (-1, cp, it.d, si)
                    if best is None or key < best[0]: best = (key, si, where, cost)
            if best is None: break
            _, si, where, cost = best
            it = streams[si][heads[si]]; heads[si] += 1; it.at = g
            if pos.get(si, -1) > where: where = pos[si]
            pos[si] = where
            (lead, mem, val, trail)[where].extend(it.ins)
            room -= cost
        out.extend(lead + mem + val + trail)
        if blobs and g in blobs: out.extend(blobs[g])
        if room < 0: over += -room; overs.append((g, -room))
    left = 0
    for si, st in enumerate(streams):
        while heads[si] < len(st):
            out.extend(st[heads[si]].ins); left += st[heads[si]].cost; heads[si] += 1
    fixed = []
    for i in out:
        if fixed and i.kind == "vmem" and " lds" in i.txt and fixed[-1].kind == "salu" and " m0," in fixed[-1].txt: fixed.append(Ins("s_nop 0"))
        fixed.append(i)
    out = fixed
    if verbose: print(f"; sched {name}: mfma {n} overflow {over} leftover {left} at {overs[:24]}", file=sys.stderr)
    return out

def tighten(stream):
    d = 10**9
    for it in reversed(stream):
        d = min(d, it.d); it.d = d
    return stream

def resolve_waits(prog):
    for i, ins in enumerate(prog):
        if ins.txt != "WAIT": continue
        parts = []
        for which, kinds, mx in (("vm", ("vmem",), 63), ("lg", ("ds",), 15)):
            tgt = getattr(ins, which)
            if tgt is None: continue
            if isinstance(tgt, int): n = tgt
            else:
                tags = tgt if isinstance(tgt, (list, tuple)) else [tgt]
                n = None
                cnt = 0
                for k in range(i - 1, -1, -1):
                    p = prog[k]
                    if p.kind in kinds:
                        if p.tag in tags: n = cnt; break
                        cnt += 1
                    if which == "lg" and p.kind == "wait" and "lgkmcnt(0)" in p.txt: n = cnt; break
                    if which == "lg" and p.kind == "smem": raise ValueError("smem inside counted lgkm window")
                if n is None: raise ValueError(f"wait target {tgt} not found")
                n = min(n, mx)
            parts.append(("vmcnt(%d)" if which == "vm" else "lgkmcnt(%d)") % n)
        ins.txt = ("s_waitcnt " + " ".join(parts)) if parts else "s_nop 0"
        if not parts: ins.kind = "salu"

REG = re.compile(r"\b([vas])\[(\d+):(\d+)\]|\b([vas])(\d+)\b|\b(vcc|m0|exec|scc)\b")
def regs_of(op):
    r = set()
    for m in REG.finditer(op):
        if m.group(1): r |= {(m.group(1), k) for k in range(int(m.group(2)), int(m.group(3)) + 1)}
        elif m.group(4): r.add((m.group(4), int(m.group(5))))
        else: r.add((m.group(6), 0))
    return r

def rw(ins):
    t = ins.txt.split(";")[0].strip()
    m = t.split()[0]
    rest = t[len(m):].strip()
    ops = [o.strip() for o in rest.split(",")] if rest else []
    k = ins.kind
    R, Wr = set(), set()
    allr = [regs_of(o) for o in ops]
    if k == "mfma":
        Wr = allr[0]; R = allr[1] | allr[2] | allr[3]
    elif k == "ds":
        if m.startswith("ds_read"): Wr = allr[0]; R = set().union(*allr[1:])
        else: R = set().union(*allr)
    elif k == "vmem":
        if " lds" in t: R = set().union(*allr) | {("m0", 0)}
        elif m.startswith("buffer_load") or m.startswith("global_load"): Wr = allr[0]; R = set().union(*allr[1:])
        else: R = set().union(*allr)
    elif k in ("valu", "trans"):
        if "swap" in m: Wr = allr[0] | allr[1]; R = set(Wr)
        else:
            Wr = allr[0]; R = set().union(*allr[1:]) if len(allr) > 1 else set()
            if m.startswith("v_cndmask") and len(ops) == 3: R.add(("vcc", 0))
            if m.startswith("v_fmac") or m.startswith("v_dot2c"): R |= Wr
    elif k == "salu":
        if m.startswith("s_cmp") or m in ("s_nop", "s_sleep", "s_setprio", "s_endpgm"): R = set().union(*allr) if allr else set()
        else:
            Wr = allr[0]; R = set().union(*allr[1:]) if len(allr) > 1 else set()
    elif k == "smem":
        Wr = allr[0]; R = set().union(*allr[1:]) if len(allr) > 1 else set()
    elif k == "br":
        if "vcc" in m: R = {("vcc", 0)}
    return R, Wr

def states(ins):
    if ins.kind in ("label", "raw"): return 0
    if ins.txt.startswith("s_nop"): return int(ins.txt.split()[1]) + 1
    return 1

def check(prog, name=""):
    errs = []
    info = [(i, rw(i)) for i in prog]
    pend_ds = []; pend_vm = []
    for n, (ins, (R, Wr)) in enumerate(info):
        k = ins.kind
        if k in ("label", "raw"): continue
        if k == "wait":
            mv = re.search(r"vmcnt\((\d+)\)", ins.txt); ml = re.search(r"lgkmcnt\((\d+)\)", ins.txt)
            if mv:
                c = int(mv.group(1)); pend_vm = pend_vm[len(pend_vm) - c:] if c < len(pend_vm) else pend_vm
                if c == 0: pend_vm = []
            if ml:
                c = int(ml.group(1)); pend_ds = pend_ds[len(pend_ds) - c:] if c < len(pend_ds) else pend_ds
                if c == 0: pend_ds = []
            continue
        touch = R | Wr
        for lst, nm in ((pend_ds, "ds"), (pend_vm, "vm")):
            for (pi, pw) in lst:
                if pw & touch: errs.append(f"{name}[{n}] {ins.txt}  touches pending {nm} dest of: {prog[pi].txt}")
        if k == "ds" or k == "smem": pend_ds.append((n, Wr))
        if k == "vmem": pend_vm.append((n, Wr))
        if len(pend_vm) > 63: errs.append(f"{name}[{n}] more than 63 vmem outstanding")
        dist = 0
        for j in range(n - 1, max(-1, n - 40), -1):
            p, (pR, pW) = info[j]
            if p.kind in ("label", "raw"): continue
            if dist >= 12: break
            need = 0
            pv = p.kind in ("valu", "trans")
            if pv and k == "mfma" and (pW & R): need = 2
            if p.kind == "mfma":
                if k in ("valu", "trans") and (pW & touch): need = 8
                if k in ("ds", "vmem") and (pW & touch): need = 8
                if k == "mfma":
                    ops = [o.strip() for o in ins.txt.split(None, 1)[1].split(",")]
                    if pW & (regs_of(ops[1]) | regs_of(ops[2])): need = 8
                    c = regs_of(ops[3])
                    if (pW & c) and pW != c: need = max(need, 6)
                    if (pW & Wr) and not (pW == c and pW == Wr): need = max(need, 6)
                if k in ("valu", "trans"):
                    pops = [o.strip() for o in p.txt.split(None, 1)[1].split(",")]
                    if regs_of(pops[3]) & Wr: need = max(need, 3)
            if p.kind == "trans" and k == "valu" and (pW & R): need = max(need, 1)
            if pv and "permlane" in ins.txt and (pW & R): need = max(need, 2)
            if pv and "readfirstlane" in ins.txt and (pW & R): need = max(need, 1)
            sW = {r for r in pW if r[0] in ("s", "vcc")}
            if pv and sW:
                if k in ("valu", "trans") and (sW & R): need = max(need, 2)
                if k == "vmem" and (sW & R): need = max(need, 5)
            if p.kind == "salu" and ("m0", 0) in pW and k == "vmem" and ("m0", 0) in R: need = max(need, 1)
            if p.kind == "vmem" and "store_dwordx4" in p.txt:
                data = regs_of(p.txt.split(None, 1)[1].split(",")[0])
                if data & Wr: need = max(need, 2)
            if need > dist: errs.append(f"{name}[{n}] {ins.txt}  needs {need} states after [{j}] {p.txt} (has {dist})")
            dist += states(p)
    return errs
```

```python
import sys, math, struct
from asmlib import *

KN = "standalone__gqa_block_cached__near_ridge_kernel"
OPT = dict(stamps="", nt_kv=True, nt_x=False, nt_w=False, pretouch=True, map2=True, xlead=4, zero="",
           codepf=True, out_flag="", kvs=7, xfirst=2, tlb=True, wqsp=3, ptat=7, npair=6,
           sleep=2, nd=0, kend=24, per2a=3, nostage=True, big=True, bar2a=2, early=True)
for a in sys.argv[2:]:
    k, v = a.split("=")
    assert k in OPT, k
    OPT[k] = type(OPT[k])(int(v)) if not isinstance(OPT[k], str) else v

def f2u(f): return struct.unpack("<I", struct.pack("<f", f))[0]
CSCALE = math.log2(math.e) / 16.0
THRESH = 8.0
KS = 16896
def KP(j): return ((j % 9) + 2) % 9 * KS
WA = [0, 16384, 101376, 117760, 134144]
NR = 5
def wslot(s): return (s + 4) % NR
XU = [33792 + 12288 * u for u in range(5)] + [150528, 33792]
X1 = 131072
FLAG0 = 32 << 20
NP = OPT["npair"]
STG = [("p", k) for k in range(NP)] + [(0, st) for st in range(NP // 2, 7)] + [(1, st) for st in range(NP // 2, 7)] + \
      [(2, st) for st in range(7)] + [(3, st) for st in range(7)]
assert len(STG) == 28 and NP % 2 == 0
def unit_of(s, hi):
    t, k = STG[s]
    return (hi, k) if t == "p" else (t, 2 * k + hi)
XNEED = {}; DONE = {}
for _s in range(27, -1, -1):
    for _h in range(2): XNEED[unit_of(_s, _h)[1]] = _s
for _s in range(28):
    for _h in range(2): DONE[unit_of(_s, _h)[0]] = 24 * (_s + 1)
ITEMS = [("V", 0, _q) for _q in range(4)]
for _c in (1, 2):
    _w = [("W", _c - 1, _p) for _p in range(7)]
    ITEMS += [("V", _c, 0)] + _w[0:2] + [("V", _c, 1)] + _w[2:4] + [("V", _c, 2)] + _w[4:5] + [("V", _c, 3)] + _w[5:7]
ND = OPT["nd"]
_w = [("W", 2, _p) for _p in range(7)]
_cut = [0, (ND + 2) // 3, (2 * ND + 2) // 3, ND]
for _q in range(4): ITEMS += [("V", 3, _q)] + (_w[_cut[_q]:_cut[_q + 1]] if _q < 3 else _w[ND:ND + 3])
for _p in range(7): ITEMS += ([_w[_p]] if _p >= ND + 3 else []) + [("W", 3, _p)]
assert len(ITEMS) == 44 and len(set(ITEMS)) == 44
RB = 8
NT_KV = " nt" if OPT["nt_kv"] else ""
NT_X = " nt" if OPT["nt_x"] else ""
NT_W = " nt" if OPT["nt_w"] else ""

sFl, sPT = 4, 12
sX, sK, sV, sWq, sWo, sWs, sDbg, sOut = 20, 24, 28, 32, 36, 40, 44, 48
sB, sH, sRot, sC, sT, sKVm, sWqm, sWom = 52, 53, 54, 55, 56, 57, 58, 59
sWqOff = 60
sTmp, sVw, sOk = 67, 68, 69
sTo = 70
sMask = 74
sCg, sTmp2, sSt, sWoW = 76, 77, 78, 79
sU = 80
sHo, sHm = 82, 83
sXOff, sXm = 84, 91
sSrc = 84
sRet = 94
STAMPS = [96, 98, 100, 8, 16, 0, 22, 20]
def srd(d): return f"s[{d}:{d+3}]"
vK, vMx, vDv, vDw = 1, 2, 3, 4
vXw, vXr_ = 1, 2
vD = 5
vRl = 5
vT = 8
vR = [9, 15]
vA = 10
vL16 = 14
SB = [16, 40]
NEGM = 64
SPARE = 76
PB = 88
ACC1 = [16, 64, 112, 64]
FR1 = 160
NF1 = 12
KREG = {4: 'v208', 5: 'a72', 6: 'v228'}
vKw = 245
vW = 224
vXo = 228
vXr = 232
vPT = 234
vT1 = 244
DUMMY = 236
vA2 = 246
vXr2 = 252
vFc = 112
OF3 = 136
vSel = 216
OWN = 184
EP = 196
vFl, vFs, vPoll = 212, 213, 214
aQ = 0
aX = 88
aOut = 0
aT0 = 96
aFR = 168
aL, aOnes = 232, 244
aOF = 208
NF2 = 10
def vr(b, n=4): return f"v[{b}:{b+n-1}]"
def ar(b, n=4): return f"a[{b}:{b+n-1}]"
def Qf(rt, ds): return ar(aQ + 4 * (ds * 3 + rt))
def Xf(slot, rt): return ar(aX + 4 * (slot * 3 + rt))
def Sreg(buf, rt, T): return SB[buf] + rt * 8 + T * 4
def Preg(j, rt): return PB + 12 * j + 4 * rt if j < 14 else Sreg(j & 1, rt, 0)
def Otile(dt, rt): return [NEGM + 4 * rt, SPARE + 4 * rt, Sreg(0, rt, 1), Sreg(1, rt, 1)][dt]
def FR(fi): return aFR + 4 * (fi % 16 if fi < 256 else (fi - 256) % NF2)
MF = "v_mfma_f32_16x16x32_bf16"

class G: nstamp = 0
def stamp(P, kind):
    if not any(c in OPT["stamps"] for c in kind): return
    j = G.nstamp; G.nstamp += 1
    P += [Ins("s_memrealtime s[92:93]"), Ins("s_waitcnt lgkmcnt(0)"), Ins(f"s_mov_b32 s{STAMPS[j]}, s92"),
          Ins("s_memtime s[92:93]"), Ins("s_waitcnt lgkmcnt(0)"), Ins(f"s_mov_b32 s{STAMPS[j]+1}, s92")]

def L(P, s):
    for line in s.strip().split("\n"):
        line = line.strip()
        if line: P.append(Ins(line))
def items(txt, e, d):
    return [Item(Ins(x.strip(), cost=2 if x.strip().startswith(("buffer", "v_rcp", "v_exp")) else 1), e, d) for x in txt.strip().split("\n") if x.strip()]

def spaced(lst, its, e0, dmax, sp, lo=0):
    k = 0
    for x in its:
        e = min(e0 + int(sp * k), dmax)
        if x[0].kind == "vmem":
            lst.append(Item(x, e, min(e + 1, dmax))); k += 1
        else:
            lst.append(Item(x, lo, max(e - 1, -1)))

def inline(P, grp):
    for x in grp:
        P += x
        if " m0," in x[-1].txt: P.append(Ins("s_nop 0"))

def wq_dma(s):
    r = []
    t, k = STG[s]
    if t == "p":
        so = sWqOff + (k >> 1)
        if k & 1:
            r.append([Ins(f"s_add_u32 s{sTmp2}, s{so}, 262144")]); so = sTmp2
    else:
        so = sWqOff + k
        if STG[s - 1][0] != t:
            r.append([Ins(f"s_lshl_b32 s{sTmp}, s{sU+1}, 18")])
            r.append([Ins(f"s_add_u32 s{sTmp}, s{sTmp}, {128*t}")])
            r.append([Ins(f"s_add_u32 s{sWq}, s10, s{sTmp}"), Ins(f"s_addc_u32 s{sWq+1}, s11, 0")])
    r.append([Ins(f"s_add_u32 m0, s{sWqm}, {WA[wslot(s)]}")])
    for ch in range(4):
        r.append([Ins(f"buffer_load_dwordx4 v{vW+ch}, {srd(sWq)}, s{so} offen offset:{ch*1024}{NT_W} lds", cost=2, tag=f"wq{s}")])
    return r

def x_dma(u):
    r = [[Ins(f"s_add_u32 m0, s{sXm}, {XU[u]}")]]
    for i in range(3):
        r.append([Ins(f"buffer_load_dwordx4 v{vXo+i}, {srd(sX)}, s{sXOff+u} offen offset:{i*1024}{NT_X} lds", cost=2, tag=f"x{u}")])
    return r

def k_dma(j, ks=range(4)):
    r = [[Ins(f"s_add_u32 s{sHm}, s{sHo}, {j*16384}")], [Ins(f"s_add_u32 m0, s{sKVm}, {KP(j)}")]]
    for k in ks:
        r.append([Ins(f"buffer_load_dwordx4 v{vD+k}, {srd(sK)}, s{sHm} offen offset:{k*1056}{NT_KV} lds", cost=2, tag=f"K{j}")])
    return r

def kreg(j, k):
    f, b = KREG[j][0], int(KREG[j][1:]) + 4 * k
    return f"{f}[{b}:{b+3}]"
def k_load(j, k):
    return [[Ins(f"s_add_u32 s{sHm}, s{sHo}, {j*16384 + 96}")],
            [Ins(f"buffer_load_dwordx4 {kreg(j, k)}, v{vL16}, {srd(sK)}, s{sHm} offen offset:{k*1024}{NT_KV}", cost=2, tag=f"K{j}")]]
def paced(groups, i0, i1):
    r = []
    for gi in range(i0 // 4, (i1 + 3) // 4):
        if gi >= len(groups): break
        grp = groups[gi]; ns = len(grp) - 4
        ks = [k for k in range(4) if i0 <= 4 * gi + k < i1]
        if ks: r += (grp[:ns] if (ks[0] == 0 or grp[0][0].txt.split()[1].startswith(f"s{sHm}")) else grp[ns-1:ns]) + [grp[ns + k] for k in ks]
    return r

def item_dma(n):
    t, c, i = ITEMS[n]
    r = []
    if t == "V":
        for ch in range(4): r.append([Ins(f"s_add_u32 s{sTo+ch}, s{sVw}, {i*65536 + c*128 + (0, -512, 6144, 5632)[ch] + 512}")])
        r.append([Ins(f"s_add_u32 m0, s{sWqm}, {(n % RB) * 16384}")])
        for ch in range(4):
            r.append([Ins(f"buffer_load_dwordx4 v{vDv}, {srd(sV)}, s{sTo+ch} offen offset:{ch*1024}{NT_KV} lds", cost=2, tag=f"n{n}")])
    else:
        for ch in range(4): r.append([Ins(f"s_add_u32 s{sTo+ch}, s{sWqOff+i}, {c*64*896 + ch*6144}")])
        r.append([Ins(f"s_add_u32 m0, s{sWom}, {(n % RB) * 16384}")])
        for ch in range(4):
            r.append([Ins(f"buffer_load_dwordx4 v{vDw}, {srd(sWo)}, s{sTo+ch} offen offset:{ch*1024}{NT_W} lds", cost=2, tag=f"n{n}")])
    return r

def STREAM2A(): return [k_dma(j) for j in range(7, 16)] + [item_dma(n) for n in range(RB)]

def mksrd(d, base, add, size, neg=None):
    if {sK: "k", sV: "k", sWq: "q", sX: "x", sWo: "o"}.get(d, "-") in OPT["zero"]: size = 0
    t = f"s_add_u32 s{d}, s{base}, {add}\ns_addc_u32 s{d+1}, s{base+1}, {neg or 0}\ns_and_b32 s{d+1}, s{d+1}, 0xffff\n"
    return t + f"s_mov_b32 s{d+2}, {size}\ns_mov_b32 s{d+3}, 0x20000\n"

def prologue(P):
    if OPT["stamps"]: L(P, "s_memrealtime s[92:93]\ns_memtime s[94:95]")
    L(P, "s_cmp_ge_u32 s2, 256\ns_cbranch_scc1 L_end\ns_load_dwordx16 s[4:19], s[0:1], 0")
    if OPT["codepf"]:
        L(P, """s_getpc_b64 s[20:21]
L_pc:
s_lshr_b32 s22, s2, 3
v_lshl_add_u32 v250, v0, 5, s22
v_lshlrev_b32 v250, 7, v250
v_min_u32 v250, (L_end-L_pc), v250
global_load_dword v251, v250, s[20:21]""")
    L(P, f"v_lshrrev_b32 v{vT1}, 6, v0\nv_and_b32 v0, 63, v0")
    if OPT["map2"]:
        L(P, f"""s_lshr_b32 s{sB}, s2, 4
v_readfirstlane_b32 s3, v{vT1}
s_lshl_b32 s{sTmp}, s2, 2
s_and_b32 s{sTmp}, s{sTmp}, 16
s_add_u32 s{sB}, s{sB}, s{sTmp}
s_and_b32 s{sH}, s2, 3
s_lshl_b32 s{sH}, s{sH}, 1
s_bfe_u32 s{sTmp}, s2, 0x10003
s_add_u32 s{sH}, s{sH}, s{sTmp}""")
    else:
        L(P, f"s_lshr_b32 s{sB}, s2, 3\nv_readfirstlane_b32 s3, v{vT1}\ns_and_b32 s{sH}, s2, 7")
    a, b, c = DUMMY, DUMMY + 1, DUMMY + 2
    L(P, f"""
s_mul_i32 s{sTmp}, s{sB}, 37
s_lshr_b32 s{sTmp}, s{sTmp}, 8
s_mul_i32 s{sTmp}, s{sTmp}, 7
s_sub_u32 s{sRot}, s{sB}, s{sTmp}
v_lshlrev_b32 v{vL16}, 4, v0
v_lshrrev_b32 v{a}, 1, v0
v_lshrrev_b32 v{b}, 4, v0
v_xor_b32 v{a}, v{a}, v{b}
v_and_b32 v{a}, 3, v{a}
v_lshrrev_b32 v{b}, 1, v{a}
v_lshlrev_b32 v{b}, 2, v{b}
v_and_b32 v{c}, 1, v{a}
v_or_b32 v{b}, v{b}, v{c}
v_and_b32 v{c}, 1, v0
v_lshl_or_b32 v{b}, v{c}, 1, v{b}
v_lshlrev_b32 v{b}, 4, v{b}
v_lshl_or_b32 v{vDw}, v{a}, 1, v{c}
v_bfe_u32 v{c}, v0, 3, 2
v_lshl_add_u32 v{b}, v{c}, 13, v{b}
v_lshrrev_b32 v{c}, 5, v0
v_lshl_add_u32 v{vW}, v{c}, 16, v{b}
v_add_u32 v{vW+1}, {4*8192-1024}, v{vW}
v_add_u32 v{vW+2}, {16*8192-2048}, v{vW}
v_add_u32 v{vW+3}, {20*8192-3072}, v{vW}
s_and_b32 s{sU}, s3, 1
s_lshr_b32 s{sU+1}, s3, 1
s_lshl_b32 s{sHo}, s{sU}, 9
s_lshl_b32 s{sWqm}, s3, 12
s_mul_i32 s{sXm}, s3, 3072
s_mul_i32 s{sTmp}, s3, 24
v_lshrrev_b32 v{a}, 3, v0
v_add_u32 v{a}, s{sTmp}, v{a}
v_and_b32 v{c}, 7, v0
""")
    for i in range(3):
        L(P, f"""
v_bfe_u32 v{b}, v{a}, 1, 3
v_xor_b32 v{b}, v{b}, v{c}
v_lshlrev_b32 v{b}, 4, v{b}
v_mul_u32_u24 v{vXo+i}, 896, v{a}
v_add_u32 v{vXo+i}, v{vXo+i}, v{b}
""")
        if i: L(P, f"v_subrev_u32 v{vXo+i}, {1024*i}, v{vXo+i}")
        if i < 2: L(P, f"v_add_u32 v{a}, 8, v{a}")
    L(P, f"s_mov_b32 s{sCg}, s{sRot}")
    def koff(st):
        L(P, f"""
s_lshl_b32 s{sWqOff+st}, s{sCg}, 19
s_add_u32 s{sWqOff+st}, s{sWqOff+st}, s{sHo}
s_lshl_b32 s{sXOff+st}, s{sCg}, 7
s_add_u32 s{sCg}, s{sCg}, 1
s_cmp_eq_u32 s{sCg}, 7
s_cselect_b32 s{sCg}, 0, s{sCg}
""")
    koff(0); koff(1)
    L(P, f"""
s_lshl_b32 s{sTmp}, s{sH}, 10
s_lshl_b32 s{sTmp2}, s{sU+1}, 7
s_mul_i32 s{sSt}, s{sB}, 86016
s_waitcnt lgkmcnt(0)
""")
    if OPT["stamps"]:
        L(P, f"s_mov_b32 s{STAMPS[0]}, s92\ns_mov_b32 s{STAMPS[0]+1}, s94"); G.nstamp = 1
    stamp(P, "a")
    L(P, f"s_add_u32 s10, s10, s{sTmp}\ns_addc_u32 s11, s11, 0\ns_and_b32 s11, s11, 0xffff")
    L(P, mksrd(sWq, 10, f"s{sTmp2}", 447 * 8192 + 640))
    inline(P, wq_dma(0))
    L(P, mksrd(sX, 4, f"s{sSt}", 86016))
    inline(P, x_dma(0))
    a, b, c = 208, 209, 210
    L(P, f"""
v_bfe_u32 v{a}, v0, 2, 3
v_and_b32 v{c}, 3, v0
v_lshlrev_b32 v{b}, 7, v{a}
v_lshl_add_u32 v{b}, v{c}, 3, v{b}
v_lshrrev_b32 v{c}, 5, v0
v_lshl_add_u32 v{b}, v{c}, 11, v{b}
s_lshl_b32 s{sTmp}, s{sU}, 12
v_add_u32 v{b}, s{sTmp}, v{b}
v_lshrrev_b32 v{a}, 1, v{a}
""")
    for t in range(4):
        L(P, f"v_xor_b32 v{c}, {t}, v{a}\nv_lshl_add_u32 v{vA+t}, v{c}, 5, v{b}\nv_add_u32 v{vA2+t}, {WA[2]}, v{vA+t}")
    L(P, f"""
v_and_b32 v{a}, 15, v0
v_lshlrev_b32 v{b}, 7, v{a}
s_mul_i32 s{sTmp}, s{sU+1}, 6144
s_add_u32 s{sTmp}, s{sTmp}, {XU[0]}
v_add_u32 v{b}, s{sTmp}, v{b}
v_lshrrev_b32 v{a}, 1, v{a}
v_lshrrev_b32 v{c}, 4, v0
v_xor_b32 v{a}, v{a}, v{c}
v_lshl_add_u32 v{vXr}, v{a}, 4, v{b}
v_xor_b32 v{a}, 4, v{a}
v_lshl_add_u32 v{vXr+1}, v{a}, 4, v{b}
v_add_u32 v{vXr2}, {XU[5]-XU[0]}, v{vXr}
v_add_u32 v{vXr2+1}, {XU[5]-XU[0]}, v{vXr+1}
""")
    inline(P, wq_dma(1))
    for st in range(2, 7): koff(st)
    L(P, f"""
s_lshl_b32 s{sTmp}, s{sB}, 3
s_add_u32 s{sTmp}, s{sTmp}, s{sH}
s_lshl_b32 s{sCg}, s{sTmp}, 18
s_sub_u32 s{sTmp}, s{sCg}, 96
s_cselect_b32 s{sTmp2}, -1, 0
""")
    L(P, mksrd(sK, 6, f"s{sTmp}", 262144 + 96, f"s{sTmp2}"))
    L(P, f"s_sub_u32 s{sTmp}, s{sCg}, 512\n" + mksrd(sV, 8, f"s{sTmp}", 262144 + 512, f"s{sTmp2}"))
    inline(P, x_dma(1) + wq_dma(2))
    L(P, f"s_mul_i32 s{sTmp}, s{sH}, 458752\n" + mksrd(sWo, 12, f"s{sTmp}", 458752))
    L(P, f"s_mul_i32 s{sTmp}, s{sB}, 688128\n" + mksrd(sWs, 18, f"s{sTmp}", 688128))
    L(P, mksrd(sOut, 14, f"s{sSt}", 86016) + mksrd(sDbg, 16, 0, 256))
    L(P, f"""
s_mov_b32 s{sC}, {hex(f2u(CSCALE))}
s_mov_b32 s{sT}, {hex(f2u(THRESH))}
s_mul_i32 s{sKVm}, s3, 4224
s_lshl_b32 s{sHo}, s3, 12
s_lshl_b32 s{sVw}, s3, 14
s_lshl_b32 s{sWom}, s{sU}, 13
s_lshl_b32 s{sTmp}, s{sU+1}, 12
s_add_u32 s{sWom}, s{sWom}, s{sTmp}
s_mul_i32 s{sWoW}, s{sU}, {256*896}
s_mul_i32 s{sTmp}, s{sU+1}, {32*896}
s_add_u32 s{sWoW}, s{sWoW}, s{sTmp}
v_add_u32 v{vD}, 96, v{vL16}
v_add_u32 v{vD+1}, 64, v{vL16}
v_add_u32 v{vD+2}, 32, v{vL16}
v_mov_b32 v{vD+3}, v{vL16}
v_and_b32 v{a}, 7, v0
v_mul_u32_u24 v{a}, 1056, v{a}
v_bfe_u32 v{b}, v0, 3, 1
v_lshl_add_u32 v{a}, v{b}, 9, v{a}
v_lshrrev_b32 v{b}, 4, v0
v_lshl_add_u32 v{a}, v{b}, 4, v{a}
v_add_u32 v{vK}, {KP(0)}, v{a}
s_add_u32 s{sTmp}, s{sKVm}, {KP(4)}
v_add_u32 v{vKw}, s{sTmp}, v{vL16}
v_lshlrev_b32 v{b}, 4, v{vDw}
v_lshrrev_b32 v{a}, 3, v0
v_lshl_add_u32 v{vDv}, v{a}, 10, v{b}
v_mul_u32_u24 v{a}, 896, v{a}
v_add_u32 v{vDw}, v{a}, v{b}
""")
    inline(P, wq_dma(3))
    for u in range(2, OPT["xfirst"]): inline(P, x_dma(u))
    if OPT["pretouch"]:
        n = 16 if OPT["map2"] else 32
        rows = 448 // n
        L(P, f"""
s_and_b32 s{sTmp}, s{sB}, {n-1}
s_mul_i32 s{sTmp}, s{sTmp}, {rows}
s_lshl_b32 s{sTmp2}, s3, 3
s_add_u32 s{sTmp2}, s{sTmp2}, s{sTmp}
s_add_u32 s{sTmp}, s{sTmp}, {rows-1}
v_lshrrev_b32 v{a}, 3, v0
v_add_u32 v{a}, s{sTmp2}, v{a}
v_min_u32 v{a}, s{sTmp}, v{a}
v_lshlrev_b32 v{a}, 13, v{a}
v_and_b32 v{b}, 7, v0
v_or_b32 v{b}, 2, v{b}
v_lshl_add_u32 v{vPT}, v{b}, 7, v{a}
""")
        L(P, mksrd(sPT, 10, 0, 447 * 8192 + 1024))
    L(P, f"""
s_lshl_b32 s{sTmp}, s{sB}, 2
s_add_u32 s{sTmp}, s{sTmp}, s3
s_lshl_b32 s{sTmp}, s{sTmp}, 7
s_add_u32 s{sTmp}, s{sTmp}, {FLAG0}
""" + mksrd(sFl, 18, f"s{sTmp}", 32) + f"""
s_lshl_b32 s{sTmp}, s{sH}, 2
v_lshlrev_b32 v{a}, 12, v0
v_add_u32 v{vFc}, s{sTmp}, v{a}
v_mov_b32 v{vFc+1}, 0
""")
    P.append(Ins(f"buffer_store_dword v{vFc+1}, v{vFc}, {srd(sFl)}, 0 offen sc1", tag="clr"))
    if OPT["tlb"]:
        L(P, f"v_mov_b32 v{a}, 512")
        for i, d in enumerate((sK, sV, sWo, sWs, sOut)):
            P.append(Ins(f"buffer_load_dword v{DUMMY+i}, v{a}, {srd(d)}, 0 offen"))

def q_epilogue(dg, win, sA, sB_, sC_):
    base = ACC1[dg]
    u = 0
    for e in range(2):
        for rt in range(3):
            e0, d0 = win(u); u += 1
            A = base + ((2 * e) * 3 + rt) * 4; B = base + ((2 * e + 1) * 3 + rt) * 4
            for k in range(4): sA.append(Item(Ins(f"v_mul_f32 v{A+k}, s{sC}, v{A+k}"), e0, d0 - 4))
            for k in range(4): sA.append(Item(Ins(f"v_mul_f32 v{B+k}, s{sC}, v{B+k}"), e0, d0 - 4))
            cv = [Item(Ins(x), e0, d0 - 3) for x in (
                  f"v_cvt_pk_bf16_f32 v{A}, v{A}, v{A+1}", f"v_cvt_pk_bf16_f32 v{B}, v{B}, v{B+1}",
                  f"v_cvt_pk_bf16_f32 v{A+1}, v{A+2}, v{A+3}", f"v_cvt_pk_bf16_f32 v{B+1}, v{B+2}, v{B+3}")]
            sA += cv
            sw = [Item(Ins(f"v_permlane16_swap_b32 v{A}, v{B}", cost=2), e0, d0 - 1, deps=cv, lag=2),
                  Item(Ins(f"v_permlane16_swap_b32 v{A+1}, v{B+1}", cost=2), e0, d0 - 1, deps=cv, lag=2)]
            sB_ += sw
            q = aQ + 4 * ((2 * dg + e) * 3 + rt)
            for dst, src, dep in ((q, A, 0), (q + 2, B, 0), (q + 1, A + 1, 1), (q + 3, B + 1, 1)):
                sC_.append(Item(Ins(f"v_accvgpr_write_b32 a{dst}, v{src}"), e0, d0, deps=[sw[dep]]))

def kread(fi, ds, T):
    return Ins(f"ds_read_b128 {ar(FR(fi))}, v{vK} offset:{T*8448 + ds*64}", tag=f"f{fi}")
def kstep(j):
    d = KP(j + 1) - KP(j)
    return f"v_add_u32 v{vK}, {d}, v{vK}" if d > 0 else f"v_subrev_u32 v{vK}, {-d}, v{vK}"

def rdl(s, f):
    if s == 0: return -1 if f < 4 else 2 * f - 6
    return 24 * s + min(3 * (f & 6) - 7 + (2 if f >= 2 else 0), 7)

def phase1_and_qk0(P):
    M = []
    for s in range(28):
        for f in range(8):
            hi, t = f >> 2, f & 3
            dg, slot = unit_of(s, hi)
            for rt in range(3):
                acc = vr(ACC1[dg] + (t * 3 + rt) * 4)
                M.append(Ins(f"{MF} {acc}, {vr(FR1 + 4*((8*s+f) % NF1))}, {Xf(slot, rt)}, {'0' if slot == 0 else acc}"))
    n1 = len(M)
    for ds in range(8):
        for T in range(2):
            for rt in range(3):
                acc = vr(Sreg(0, rt, T))
                M.append(Ins(f"{MF} {acc}, {ar(FR(2*ds+T))}, {Qf(rt, ds)}, {'0' if ds == 0 else acc}"))
    sync, reads, dma, epi, epi2, epi3, misc = [], [], [], [], [], [], []
    plan = {}
    xrd_at = {k: max(XNEED[k] - 1, 0) for k in range(14)}
    xw_at = {u: xrd_at[2 * u] for u in range(7)}
    xfree = {u: xrd_at[2 * u + 1] + 2 for u in range(7)}
    last = -1
    for u in range(OPT["xfirst"], 7):
        last = max(xw_at[u] - OPT["xlead"], last + 1, xfree[0] if u == 6 else 0)
        assert last < xw_at[u]
        plan[last] = x_dma(u)
    if OPT["pretouch"]: plan.setdefault(OPT["ptat"], []).append([Ins(f"buffer_load_dword v{DUMMY+6}, v{vPT}, {srd(sPT)}, 0 offen", cost=2)])
    tiles = [(4, 0), (5, 0), (1, xfree[2]), (2, xfree[4]), (3, xfree[4]), (6, 11), (0, xfree[6])]
    if OPT["nostage"]: tiles = [t for t in tiles if t[0] < 4]
    nl = 4 * len(tiles)
    for i in range(nl):
        j, fr = tiles[i // 4]
        s0 = OPT["kvs"] + (i * (OPT["kend"] + 1 - OPT["kvs"])) // nl
        assert fr <= s0 < 25, (j, fr, s0)
        plan.setdefault(s0, []).extend(k_load(j, i % 4) if j in KREG else k_dma(j, [i % 4]))
    wr = []
    for j, s0 in ((4, 25), (5, 26), (6, 27)):
        if OPT["nostage"]: plan[s0] = k_dma(j); continue
        sync.append(Item(W(vm=f"K{j}"), 24 * s0 - 12, 24 * s0 - 12))
        for k in range(4):
            wr.append(Item(Ins(f"ds_write_b128 v{vKw}, {kreg(j, k)} offset:{KP(j) - KP(4) + k*1056}"), 24 * s0 - 11, 24 * s0 + 10))
    plan[28] = paced(STREAM2A(), 0, OPT["per2a"])
    for s in range(29):
        g0 = max(24 * s - 13, -1)
        if s < 28: tg = [f"wq{s}"] + [f"x{u}" for u in range(7) if xw_at[u] == s]
        else: tg = ["K1", "K0"]
        xs = []
        if s in (0, 6, 14, 28): stamp(xs, "a")
        sync.append(Item([W(vm=tg, lg=f"w{8*s-1}" if s > 0 else None), Ins("s_barrier")] + xs, g0, g0))
        if s < 28:
            def xrd(slot, d):
                u = slot >> 1
                for rt in range(3):
                    off = (0 if u == 5 else XU[u] - XU[0]) + rt * 2048
                    reads.append(Item(Ins(f"ds_read_b128 {Xf(slot, rt)}, v{(vXr2 if u == 5 else vXr) + (slot & 1)} offset:{off}", tag=f"xr{slot}"), g0, d))
            if s == 0: xrd(0, -1)
            for f in range(8):
                hi, t = f >> 2, f & 3
                F = 8 * s + f
                b = FR1 + 4 * (F % NF1)
                ws_ = wslot(s)
                off = WA[ws_] - (WA[2] if ws_ >= 2 else 0) + hi * 8192
                va = (vA2 if ws_ >= 2 else vA) + t
                reads.append(Item(Ins(f"ds_read_b64_tr_b16 {vr(b,2)}, v{va} offset:{off}", tag=f"w{F}x"), g0, rdl(s, f)))
                reads.append(Item(Ins(f"ds_read_b64_tr_b16 {vr(b+2,2)}, v{va} offset:{off+1024}", tag=f"w{F}"), g0, rdl(s, f)))
            for k in range(1, 14):
                if xrd_at[k] == s: xrd(k, 24 * s + 10)
            sync.append(Item(W(lg=f"w{8*s+1}"), 24 * s - 1, 24 * s - 1))
            sync.append(Item(W(lg=f"w{8*s+3}"), 24 * s + 5, 24 * s + 5))
        else:
            for fi in range(16):
                first = n1 + 3 * fi
                reads.append(Item(kread(fi, fi >> 1, fi & 1), max(first - 15, g0 + 1), first - (first - n1) % 6 - 6))
            for i in range(8):
                sync.append(Item(W(lg=f"f{2*i+1}"), n1 + 6 * i - 1, n1 + 6 * i - 1))
        grp = (wq_dma(s + NR - 1) if s + NR - 1 < 28 else []) + plan.get(s, [])
        if s == 0: spaced(dma, grp, 0, 10, 1.5, lo=-1)
        elif s < 28: spaced(dma, grp, 24 * s - 12, 24 * s + 11, OPT["wqsp"])
        else: spaced(dma, grp, 24 * s - 11, n1 + 46, 3)
    lim = {0: n1 - 2, 1: DONE[2] - 2, 2: n1 + 21, 3: n1 + 33}
    for dg in range(4):
        e0 = DONE[dg] + 2
        win = lambda u: (e0 + (0 if u < 3 else 3), lim[dg] - ((5 - u) * 8 if dg < 3 else (2 - u % 3) * 2 - (6 if u >= 3 else 0)))
        q_epilogue(dg, win, epi, epi2, epi3)
    txt = f"s_mov_b32 s{sCg}, s{sRot}\n"
    for i in range(7):
        misc += items(txt + f"s_lshl_b32 s{sTmp}, s{sCg}, 7\ns_add_u32 s{sWqOff+i}, s{sTmp}, s{sWoW}\ns_add_u32 s{sCg}, s{sCg}, 1", 24 * 24, n1)
        misc.append(Item([Ins(f"s_cmp_eq_u32 s{sCg}, 7"), Ins(f"s_cselect_b32 s{sCg}, 0, s{sCg}")], 24 * 24, n1)); txt = ""
    misc.append(Item(Ins(f"v_mov_b32 v{vT1}, 0x3f803f80"), n1 + 10, n1 + 44))
    for k in range(4): misc.append(Item(Ins(f"v_accvgpr_write_b32 a{aOnes+k}, v{vT1}"), n1 + 10, n1 + 45))
    misc.append(Item(Ins(kstep(0)), n1 + 43, n1 + 45))
    P += schedule(M, sync, [tighten(reads), tighten(dma), tighten(wr), tighten(epi2), tighten(epi3), tighten(epi), tighten(misc)], name="p1", verbose=True)

def init_path(P):
    for fi in range(4): P.append(kread(16 + fi, fi >> 1, fi & 1))
    P += [W(vm=["K2", "K3"]), Ins("s_barrier")]
    X = SPARE
    for rt in range(3):
        s = Sreg(0, rt, 0)
        L(P, f"v_max3_f32 v{X+rt}, v{s}, v{s+1}, v{s+2}\nv_max3_f32 v{X+rt}, v{X+rt}, v{s+3}, v{s+4}\n"
             f"v_max3_f32 v{X+rt}, v{X+rt}, v{s+5}, v{s+6}\nv_max_f32 v{X+rt}, v{X+rt}, v{s+7}")
    for sw in ("v_permlane32_swap_b32", "v_permlane16_swap_b32"):
        for rt in range(3): L(P, f"v_mov_b32 v{X+3+rt}, v{X+rt}")
        for rt in range(3): L(P, f"{sw} v{X+rt}, v{X+3+rt}")
        for rt in range(3): L(P, f"v_max_f32 v{X+rt}, v{X+rt}, v{X+3+rt}")
    for rt in range(3):
        for k in range(4): L(P, f"v_sub_f32 v{NEGM+4*rt+k}, 0, v{X+rt}")
    for rt in range(3):
        s = Sreg(0, rt, 0)
        for k in range(8): L(P, f"v_sub_f32 v{s+k}, v{s+k}, v{X+rt}")

def rescale(R, name, p, last):
    L(R, f"L_resc_{name}:\ns_nop 7\ns_nop 1\ns_mov_b32 s{sTmp}, 0xffff0000")
    X = SPARE
    for rt in range(3):
        s = Sreg(p, rt, 0); o = Sreg(1 - p, rt, 0)
        L(R, f"v_max3_f32 v{X}, v{s}, v{s+1}, v{s+2}\nv_max3_f32 v{X}, v{X}, v{s+3}, v{s+4}\n"
             f"v_max3_f32 v{X}, v{X}, v{s+5}, v{s+6}\nv_max3_f32 v{X}, v{X}, v{s+7}, 0")
        for sw in ("v_permlane32_swap_b32", "v_permlane16_swap_b32"):
            L(R, f"v_mov_b32 v{X+1}, v{X}\ns_nop 1\n{sw} v{X}, v{X+1}\nv_max_f32 v{X}, v{X}, v{X+1}")
        L(R, f"v_ceil_f32 v{X}, v{X}\nv_sub_f32 v{X+1}, 0, v{X}\nv_max_f32 v{X+1}, 0xc3480000, v{X+1}\nv_cvt_i32_f32 v{X+1}, v{X+1}\n"
             f"v_ldexp_f32 v{X+1}, 1.0, v{X+1}")
        for k in range(8): L(R, f"v_sub_f32 v{s+k}, v{s+k}, v{X}")
        for k in range(4): L(R, f"v_sub_f32 v{NEGM+4*rt+k}, v{NEGM+4*rt+k}, v{X}")
        regs = [PB + 12 * j + 4 * rt + k for j in range(14) for k in range(4)]
        if last: regs += [o + k for k in range(4)]
        else:
            for k in range(8): L(R, f"v_sub_f32 v{o+k}, v{o+k}, v{X}")
        for r in regs:
            L(R, f"v_lshlrev_b32 v{X+2}, 16, v{r}\nv_and_b32 v{X+3}, s{sTmp}, v{r}\nv_mul_f32 v{X+2}, v{X+2}, v{X+1}\n"
                 f"v_mul_f32 v{X+3}, v{X+3}, v{X+1}\nv_cvt_pk_bf16_f32 v{r}, v{X+2}, v{X+3}")
        for a in [aL + 4 * rt + k for k in range(4)]:
            L(R, f"v_accvgpr_read_b32 v{X+2}, a{a}\nv_mul_f32 v{X+2}, v{X+2}, v{X+1}\nv_accvgpr_write_b32 a{a}, v{X+2}")
    L(R, f"s_nop 1\ns_setpc_b64 s[{sRet}:{sRet+1}]")

def lmfma(j): return [Ins(f"{MF} {ar(aL+4*rt)}, {ar(aOnes)}, {vr(Preg(j, rt))}, {'0' if j == 0 else ar(aL+4*rt)}") for rt in range(3)]
def maxchain(p):
    s = SB[p]
    o = [s + 8 * rt + k for k in range(4) for rt in range(3)] + [s + 8 * rt + 4 + k for rt in range(3) for k in range(4)]
    r = [f"v_max3_f32 v{vMx}, v{o[0]}, v{o[1]}, v{o[2]}"]
    r += [f"v_max3_f32 v{vMx}, v{vMx}, v{o[k]}, v{o[k+1]}" for k in range(3, 23, 2)]
    return r + [f"v_max_f32 v{vMx}, v{vMx}, v{o[23]}", f"v_cmp_lt_f32 vcc, s{sT}, v{vMx}"]
def softmax_items(j, e, dl, soft, cvts, deps=()):
    p = j & 1
    for rt in range(3):
        s = Sreg(p, rt, 0)
        ex = [Item(Ins(f"v_exp_f32 v{s+k}, v{s+k}", cost=2), e, dl - 1, deps=deps) for k in range(8)]
        soft += ex
        cvts += [Item(Ins(f"v_cvt_pk_bf16_f32 v{Preg(j,rt)+k}, v{s+2*k}, v{s+2*k+1}"), e, dl, deps=ex[2*k:2*k+2]) for k in range(4)]

def block(P, R, j):
    p = j & 1
    FK = 16 * (j + 1)
    M = lmfma(j - 1) if j else []
    n0 = len(M)
    for ds in range(8):
        for T in range(2):
            for rt in range(3):
                acc = vr(Sreg(1 - p, rt, T))
                M.append(Ins(f"{MF} {acc}, {ar(FR(FK + 2*ds + T))}, {Qf(rt, ds)}, {vr(NEGM + 4*rt) if ds == 0 else acc}"))
    n = len(M)
    sync, reads, soft, cvts, dma, chk, misc = [], [], [], [], [], [], []
    deps = []
    if j:
        chk += [Item(Ins(x), 1 if k < 5 else 3, n0 + 8) for k, x in enumerate(maxchain(p))]
        br = Item([Ins(f"s_cbranch_vccnz L_rare_{j}"), Ins(f"L_ret_{j}:", cost=0)], n0 + 6, n0 + 9, deps=[chk[-1]])
        chk.append(br); deps = [br]
        L(R, f"L_rare_{j}:\ns_call_b64 s[{sRet}:{sRet+1}], L_resc_{p}\ns_branch L_ret_{j}")
    softmax_items(j, 0, n - 2, soft, cvts, deps)
    for fi in range(4, 16):
        first = n0 + 3 * fi
        reads.append(Item(kread(FK + fi, fi >> 1, fi & 1), max(first - 24, 0), first - (3 * fi) % 6 - 6))
    for i in range(8):
        g = n0 + 6 * i - 1
        sync.append(Item(W(lg=f"f{FK+2*i+1}"), g, g))
    if j < 14:
        reads.append(Item(Ins(kstep(j + 1)), n - 14, n - 11))
        for fi in range(4):
            reads.append(Item(kread(FK + 16 + fi, fi >> 1, fi & 1), n - 10, n - 5))
    b2 = OPT["bar2a"]
    if j and j % b2 == 0:
        need = [t for t in range(j + 2, min(j + 2 + b2, 16)) if t not in KREG or OPT["nostage"]]
        sync.append(Item([W(vm=[f"K{t}" for t in need] if need else None), Ins("s_barrier")], 0, 0))
    per = OPT["per2a"]
    i0, i1 = per * (j + 1), per * (j + 2)
    gl = (i1 - 1) // 4
    assert gl - 2 <= j - j % b2
    spaced(dma, paced(STREAM2A(), i0, i1), 8, n - 2, 40 // per)
    a, b, c = SPARE + 4, SPARE + 5, SPARE + 6
    if j == 0:
        dma += items(f"""
s_lshl_b32 s{sTmp2}, s3, 12
s_lshl_b32 s{sTmp}, s{sB}, 3
s_add_u32 s{sTmp2}, s{sTmp2}, s{sTmp}
v_lshlrev_b32 v{a}, 12, v0
v_add_u32 v{a}, s{sTmp2}, v{a}
v_mov_b32 v{b}, 1
buffer_atomic_add v{b}, v{a}, {srd(sDbg)}, 0 offen sc1""", 0, n - 1)
    if j == 2:
        misc += items(f"""
s_lshl_b32 s{sTmp}, s{sU}, 12
v_subrev_u32 v{a}, s{sTmp}, v{vA}
v_lshrrev_b32 v{b}, 5, v0
v_lshlrev_b32 v{b}, 10, v{b}
v_sub_u32 v{vA}, v{a}, v{b}
v_xor_b32 v{vA+1}, 32, v{vA}
v_xor_b32 v{vA+2}, 64, v{vA}
v_xor_b32 v{vA+3}, 0x60, v{vA}
s_lshl_b32 s{sTmp}, s{sU}, 6
v_xor_b32 v{vR[0]}, s{sTmp}, v{vA}
v_xor_b32 v{vR[1]}, s{sTmp}, v{vA+1}""", n0 + 10, n - 1)
    if j == 5:
        misc += items(f"""
s_lshl_b32 s{sTmp}, s{sB}, 3
v_lshlrev_b32 v{SPARE+10}, 12, v0
v_add_u32 v{SPARE+10}, s{sTmp}, v{SPARE+10}
buffer_load_dword v{SPARE+11}, v{SPARE+10}, {srd(sDbg)}, 0 offen sc1""", n0 + 10, n - 1)
        misc[-1].ins[0].tag = "cnt"
    if j == 13:
        txt = f"""
s_mul_i32 s{sSt}, s3, {21*8192}
s_lshl_b32 s{sTmp2}, s{sH}, 13
s_add_u32 s{sHo}, s{sSt}, s{sTmp2}
s_lshl_b32 s{sTmp2}, s{sH}, 10
s_add_u32 s{sSt}, s{sSt}, s{sTmp2}
"""
        for i in range(7):
            txt += f"s_add_u32 s{sTmp2}, s{sTmp2}, 1024\ns_and_b32 s{sTmp2}, s{sTmp2}, 0x1fff\ns_add_u32 s{sSrc+i}, s{sTmp2}, s{sHo}\n"
        misc += items(txt, n0 + 10, n - 1)
    P += schedule(M, sync, [tighten(reads), tighten(chk), tighten(soft), tighten(cvts), tighten(dma), tighten(misc)],
                  name=f"blk{j}", verbose=(j in (0, 1, 2, 8, 14)))

def publish(val):
    return [[Ins(f"v_mov_b32 v{vT}, {val}")], [Ins(f"buffer_store_dword v{vT}, v{vFs}, {srd(sFl)}, 0 offen sc1", cost=2)]]
def unit_loads(k, dst, voff):
    return [Ins(f"buffer_load_dwordx4 {dst(i)}, v{voff}, {srd(sWs)}, s{sSrc+i} offen sc1", cost=2, tag=f"u{k}s{i}") for i in range(7)]

def phase2b(P, R):
    P += lmfma(14)
    P += [W(vm="cnt"), Ins(f"v_readfirstlane_b32 s{sOk}, v{SPARE+11}"), Ins("s_nop 3")]
    L(P, "\n".join(maxchain(1)))
    L(P, f"s_cmp_lt_u32 s{sOk}, 8\ns_cbranch_scc1 L_clr_wait\nL_clr_ok:\ns_cbranch_vccnz L_rare_15\nL_ret_15:")
    L(R, f"L_rare_15:\ns_call_b64 s[{sRet}:{sRet+1}], L_resc_last\ns_branch L_ret_15")
    F0 = 16 * 16
    N = len(ITEMS)
    M = []; start = []; frag0 = []; order = []
    nf = 0
    def ofrag(c, i): return vr(OF3 + 4 * i) if c == 3 else ar(aOF + 4 * i)
    nV3 = ITEMS.index(("V", 3, 3))
    for n, (t, c, i) in enumerate(ITEMS):
        start.append(len(M)); frag0.append(nf)
        if t == "V":
            dtmajor = i == 3
            fl = [(dt, ks) for dt in range(4) for ks in range(4)] if dtmajor else [(dt, ks) for ks in range(4) for dt in range(4)]
            for f, (dt, ks) in enumerate(fl):
                for rt in range(3):
                    acc = ar(aT0 + 4 * rt) if (c == 0 and dt == 3) else vr(Otile(dt, rt))
                    M.append(Ins(f"{MF} {acc}, {ar(FR(F0 + nf + f))}, {vr(Preg(4*i + ks, rt))}, {'0' if (i == 0 and ks == 0) else acc}"))
            if n == 2: M += lmfma(15)
        else:
            fl = [(sg, tt) for sg in range(4) for tt in range(2)]
            for f, (sg, tt) in enumerate(fl):
                for rt in range(3):
                    acc = ar(aOut + 24 * i + 8 * rt + 4 * tt)
                    M.append(Ins(f"{MF} {acc}, {ar(FR(F0 + nf + f))}, {ofrag(c, 3 * sg + rt)}, {'0' if (c == 0 and sg == 0) else acc}"))
        order.append(fl); nf += len(fl)
    start.append(len(M))
    n_all = len(M)
    groups = []
    n = 0
    while n < N:
        run = [k for k in range(n + 1, N) if all(ITEMS[x][0] == "W" for x in range(n + 1, k + 1))]
        if ITEMS[n][0] == "V": g = [n] + (run[:2] if (OPT["big"] and n >= 4) else [])
        else: g = [n] + (run[:2] if len(run) == 2 else run[:1])
        groups.append(g); n += len(g)
    sync, reads, dma, nrm, epi, xch, soft, cvts, oxr = [], [], [], [], [], [], [], [], []
    blobs = {}
    half = {"V": 0, "W": 0}
    assert (16 * OPT["per2a"]) % 4 == 0
    todo_left = list(range(4 * OPT["per2a"] - 9, RB))
    for gi, grp in enumerate(groups):
        g0 = max(start[grp[0]] - 13, -1)
        prev = groups[gi - 1] if gi else None
        lastf = F0 + frag0[grp[0]] - 1
        sync.append(Item([W(vm=f"n{grp[-1]}", lg=f"w{lastf}" if gi else None), Ins("s_barrier")], g0, g0))
        for n in grp:
            t, c, i = ITEMS[n]
            hf = (n % RB) >> 2
            regs = [vA + k for k in range(4)] if t == "V" else vR
            e = max(start[n] - 13, -1)
            if half[t] != hf:
                for r in regs: reads.append(Item(Ins(f"v_xor_b32 v{r}, 0x10000, v{r}"), e - 6, e - 1))
                half[t] = hf
            for f, x in enumerate(order[n]):
                F = F0 + frag0[n] + f
                if t == "V": va, off = vA + x[0], x[1] * 4096
                else: va, off = vR[x[1]], x[0] * 4096
                off += (n % 4) * 16384
                first = start[n] + 3 * f
                nxt = start[n + 1] - 13 - 4
                d = min(first - 3 * (f & 1) - 7 + (2 if f >= 2 else 0), nxt)
                ee = max(e, first - 3 * NF2 + 3)
                if gi == 0: ee = -1 if f < 4 else 0; d = -1 if f < 4 else max(d, 2 * f - 6)
                reads.append(Item(Ins(f"ds_read_b64_tr_b16 {ar(FR(F),2)}, v{va} offset:{off}", tag=f"w{F}x"), ee, d))
                reads.append(Item(Ins(f"ds_read_b64_tr_b16 {ar(FR(F)+2,2)}, v{va} offset:{off+2048}", tag=f"w{F}"), ee, d))
                if f % 2 == 0: sync.append(Item(W(lg=f"w{F+1}"), first - 1, first - 1)) if not (first - 1 in [start[k] - 13 for k in range(N) if k in [x_[0] for x_ in groups]]) else None
        todo = todo_left + [k + RB for k in (prev or []) if k + RB < N]
        nmax = 2 if grp[0] < 8 else 9
        todo, todo_left = todo[:nmax], todo[nmax:]
        assert all(k > grp[-1] + 1 for k in todo + todo_left), (grp, todo, todo_left)
        span = start[grp[-1] + 1] - start[grp[0]]
        its = [x for k in todo for x in item_dma(k)]
        if its: spaced(dma, its, g0 + 2, g0 + span - 1, max(3, min(8, (span - 4) / (4 * len(todo)))), lo=max(g0 - 20, 0))
    softmax_items(15, 0, start[3] - 6, soft, cvts)
    nrm += items(f"""
s_mul_i32 s{sTmp}, s{sU+1}, 12288
s_add_u32 s{sTmp}, s{sTmp}, {X1}
v_add_u32 v{vXr_}, s{sTmp}, v{vL16}
s_mul_i32 s{sTmp}, s{sU}, 6144
v_add_u32 v{vXw}, s{sTmp}, v{vXr_}""", start[2] + 8, start[3])
    for rt in range(3):
        nrm += [Item(Ins(f"v_accvgpr_read_b32 v{vRl+rt}, a{aL+4*rt}"), start[3] + 6, start[3] + 24),
                Item(Ins(f"v_rcp_f32 v{vRl+rt}, v{vRl+rt}", cost=2), start[3] + 6, start[3] + 26)]
    def norm(c, kk, rt):
        A, B = Otile(2 * kk, rt), Otile(2 * kk + 1, rt)
        r = []
        if c == 0 and kk == 1: r += [f"v_accvgpr_read_b32 v{B+k}, a{aT0+4*rt+k}" for k in range(4)]
        r += [f"v_mul_f32 v{x+k}, v{x+k}, v{vRl+rt}" for x in (A, B) for k in range(4)]
        r += [f"v_cvt_pk_bf16_f32 v{A}, v{A}, v{A+1}", f"v_cvt_pk_bf16_f32 v{A+1}, v{A+2}, v{A+3}",
              f"v_cvt_pk_bf16_f32 v{A+2}, v{B}, v{B+1}", f"v_cvt_pk_bf16_f32 v{A+3}, v{B+2}, v{B+3}"]
        return r, f"ds_write_b128 v{vXw}, {vr(A)} offset:{(kk*3+rt)*1024}"
    for c in range(4):
        n = ITEMS.index(("V", c, 3))
        s0, end = start[n], start[n + 1] - 1
        oread = [Ins(f"ds_read_b128 {ofrag(c, i)}, v{vXr_} offset:{i*1024}", tag=f"ox{c}_{i//3}") for i in range(12)]
        if c == 0:
            wr = []
            for rt in range(3):
                r, w = norm(c, 0, rt)
                nrm += [Item(Ins(x), s0 + 24 + 6, end) for x in r]; wr.append(w)
            blob = []
            L(blob, "\n".join(wr) + "\ns_nop 4")
            for rt in range(3):
                r, w = norm(c, 1, rt)
                L(blob, "\n".join(r) + "\n" + w)
            stamp(blob, "m")
            blobs[end] = blob
            gx = end + 8
        else:
            gx = start[n + 3] - 1
            for kk in range(2):
                for rt in range(3):
                    r, w = norm(c, kk, rt)
                    e = s0 + 30 if kk == 0 else end + 7
                    d = gx - 6 - (5 - 3 * kk - rt) * 7
                    nrm += [Item(Ins(x), e, d - 1) for x in r] + [Item(Ins(w, tag=f"xw{c}"), e, d)]
        sync.append(Item([W(lg=f"xw{c}" if c else 0), Ins("s_barrier")], gx, gx))
        use = start[ITEMS.index(("W", c, 0))]
        for i, x in enumerate(oread): oxr.append(Item(x, gx, use + 6 * (i // 3) - 8))
        for sg in range(4): sync.append(Item(W(lg=f"ox{c}_{sg}"), use + 6 * sg - 2, use + 6 * sg - 2))
        if c == 3: xs = []; stamp(xs, "m"); blobs[end] = xs
    ef = start[nV3 + 1] + 1
    a, b, c_ = EP, EP + 1, EP + 2
    xch += items(f"""
v_lshlrev_b32 v{vFl}, 2, v0
s_lshl_b32 s{sTmp}, s{sH}, 2
v_lshlrev_b32 v{vFs}, 12, v0
v_add_u32 v{vFs}, s{sTmp}, v{vFs}
v_lshrrev_b32 v{a}, 4, v0
v_bfe_u32 v{b}, v0, 2, 2
v_cmp_eq_u32 vcc, v{a}, v{b}
v_and_b32 v{a}, 1, v0
v_lshlrev_b32 v{a}, 4, v{a}
v_mov_b32 v{b}, 0x3f80
v_lshlrev_b32 v{a}, v{a}, v{b}
v_cndmask_b32 v{a}, 0, v{a}, vcc
v_and_b32 v{b}, 2, v0
v_cmp_eq_u32 vcc, 0, v{b}
v_mov_b32 v{vSel+2}, 0
v_mov_b32 v{vSel+3}, 0
v_cndmask_b32 v{vSel}, 0, v{a}, vcc
v_sub_u32 v{vSel+1}, v{a}, v{vSel}
v_mov_b32 v{vSel+4}, 0
v_mov_b32 v{vSel+5}, 0
v_mov_b32 v{vSel+6}, v{vSel}
v_mov_b32 v{vSel+7}, v{vSel+1}""", ef, start[ITEMS.index(("W", 3, 0)) + 1] + 4)
    tail = []
    for pos in range(7):
        n = ITEMS.index(("W", 3, pos))
        e0 = start[n + 1] + 6
        nn = ITEMS.index(("W", 3, pos + 1)) + 1 if pos < 6 else None
        for rt in range(3):
            idx = 3 * pos + rt
            b = EP + 8 * (idx & 1)
            own = OWN + 4 * (idx >> 3)
            seq = [[Ins(f"v_accvgpr_read_b32 v{b+k}, a{aOut + 24*pos + 8*rt + k}")] for k in range(8)]
            seq += [[Ins(f"s_mov_b32 s{sTmp}, s{sSt}")], [Ins(f"s_add_u32 s{sSt}, s{sSt}, 8192")]]
            seq += [[Ins(f"v_cvt_pk_bf16_f32 v{b+k}, v{b+2*k}, v{b+2*k+1}")] for k in range(4)]
            seq += [[Ins(f"s_cmp_eq_u32 s{sH}, {idx & 7}"), Ins(f"s_cbranch_scc1 L_cap_{idx}"), Ins(f"L_capr_{idx}:", cost=0)]]
            L(R, f"L_cap_{idx}:\n" + "\n".join(f"v_mov_b32 v{own+k}, v{b+k}" for k in range(4)) + f"\ns_mov_b32 s{sTmp}, 0x10000000\ns_branch L_capr_{idx}")
            seq += [[Ins(f"buffer_store_dwordx4 {vr(b)}, v{vL16}, {srd(sWs)}, s{sTmp} offen sc1", cost=2, tag=f"st{pos}")]]
            if pos < 6:
                f0 = start[ITEMS.index(("W", 3, 0)) + 1] + 6
                for x in seq: epi.append(Item(x, e0, max(f0 + (idx + 1) * (n_all - f0) // 18, e0 + 8 * (rt + 1))))
            else: tail += seq
    if OPT["early"]:
        gA = start[ITEMS.index(("W", 3, 5))] + 2
        sync.append(Item(W(vm="st2"), gA, gA))
        pa = publish(1)
        xch += [Item(pa[0], gA - 4, gA), Item(pa[1], gA + 1, gA + 3)]
        xch.append(Item(Ins(f"buffer_load_dword v{vPoll}, v{vFl}, {srd(sFl)}, 0 offen sc1", cost=2, tag="fA"), n_all - 12, n_all - 8))
    P += schedule(M, sync, [tighten(reads), tighten(oxr), tighten(dma), tighten(soft), tighten(cvts), tighten(nrm), tighten(xch), tighten(epi)],
                  name="p2b", verbose=True, blobs=blobs)
    L(P, "s_nop 7")
    for x in tail: P += x
    stamp(P, "mt")
    if OPT["early"]:
        P.append(W(vm="fA"))
        L(P, f"v_cmp_le_u32 vcc, 1, v{vPoll}")
        P += unit_loads(0, lambda i: vr(88 + 4 * i), vL16)
        L(P, f"s_mov_b32 s{sOk}, vcc_lo")
    else: L(P, f"s_mov_b32 s{sOk}, 0")
    P.append(W(vm="st5"))
    for x in publish(2): P += x
    P.append(Ins(f"buffer_load_dword v{vPoll}, v{vFl}, {srd(sFl)}, 0 offen sc1", tag="fB"))
    P.append(W(vm="st6"))
    for x in publish(3): P += x
    stamp(P, "t")

def poll(P, name, thr):
    L(P, f"""
L_{name}:
v_cmp_le_u32 vcc, {thr}, v{vPoll}
s_nop 1
s_cmp_eq_u32 vcc_lo, 0xff
s_cbranch_scc1 L_{name}_ok
""")
    n0 = len(P)
    L(P, f"""
s_sleep {OPT["sleep"]}
buffer_load_dword v{vPoll}, v{vFl}, {srd(sFl)}, 0 offen sc1
s_waitcnt vmcnt(0)
s_branch L_{name}
""")
    for i in P[n0:]: i.kind = "raw"
    L(P, f"L_{name}_ok:")

def reduce_unit(P, k, src, vout):
    A = SB[0] + 8 * k
    own = vr(OWN + 4 * k)
    L(P, f"{MF} {vr(A)}, {vr(vSel)}, {own}, 0\n{MF} {vr(A+4)}, {vr(vSel+4)}, {own}, 0")
    L(P, f"""
s_add_u32 s{sTmp}, s{sH}, {8*k}
s_mul_i32 s{sTmp2}, s{sTmp}, 11
s_lshr_b32 s{sTmp2}, s{sTmp2}, 5
s_mul_i32 s{sCg}, s{sTmp2}, 3
s_sub_u32 s{sTmp}, s{sTmp}, s{sCg}
s_mul_i32 s{sTmp}, s{sTmp}, {16*896}
s_add_u32 s{sTmp2}, s{sTmp2}, s{sRot}
s_sub_u32 s{sCg}, s{sTmp2}, 7
s_cselect_b32 s{sTmp2}, s{sTmp2}, s{sCg}
s_lshl_b32 s{sTmp2}, s{sTmp2}, 7
s_add_u32 s{sTmp}, s{sTmp}, s{sTmp2}
""")
    for i in range(7):
        P.append(W(vm=f"u{k}s{i}"))
        L(P, f"{MF} {vr(A)}, {vr(vSel)}, {src(i)}, {vr(A)}\n{MF} {vr(A+4)}, {vr(vSel+4)}, {src(i)}, {vr(A+4)}")
    L(P, "s_nop 6")
    for r in range(4): L(P, f"v_cvt_pk_bf16_f32 v{A+r}, v{A+2*r}, v{A+2*r+1}")
    L(P, f"s_nop 1\nv_permlane16_swap_b32 v{A}, v{A+2}\nv_permlane16_swap_b32 v{A+1}, v{A+3}")
    L(P, f"buffer_store_dwordx4 {vr(A)}, v{vout}, {srd(sOut)}, s{sTmp} offen {OPT['out_flag']}")

def final(P):
    vo, v1, v2 = 10, 11, 12
    U = [88, 116, 144]
    L(P, f"""
v_add_u32 v{v1}, 0x10000, v{vL16}
v_add_u32 v{v2}, 0x20000, v{vL16}
v_and_b32 v{vo}, 15, v0
v_mul_u32_u24 v{vo}, 896, v{vo}
v_bfe_u32 v13, v0, 4, 1
v_lshl_add_u32 v{vo}, v13, 5, v{vo}
v_lshrrev_b32 v13, 5, v0
v_lshl_add_u32 v{vo}, v13, 4, v{vo}
s_mul_i32 s{sTmp}, s{sU+1}, {48*896}
s_lshl_b32 s{sTmp2}, s{sU}, 6
s_add_u32 s{sTmp}, s{sTmp}, s{sTmp2}
v_add_u32 v{vo}, s{sTmp}, v{vo}
""")
    P.append(W(vm="fB"))
    poll(P, "pB", 2)
    stamp(P, "mt")
    src = lambda k: (lambda i: vr(U[k] + 4 * i))
    L(P, f"s_cmp_eq_u32 s{sOk}, 0xff\ns_cbranch_scc1 L_have0\ns_waitcnt vmcnt(0)")
    P += unit_loads(0, src(0), vL16)
    L(P, "L_have0:")
    P += unit_loads(1, src(1), v1)
    L(P, f"s_cmp_gt_u32 s{sH}, 4\ns_cbranch_scc1 L_two\ns_cmp_ge_u32 s{sH}, 2\ns_cselect_b32 s{sOk}, 3, 2")
    poll(P, "pC", f"s{sOk}")
    stamp(P, "t")
    ns = G.nstamp
    P += unit_loads(2, src(2), v2)
    for k in range(3): reduce_unit(P, k, src(k), vo)
    L(P, "s_branch L_fin\nL_two:")
    if "t" in OPT["stamps"]: G.nstamp = ns - 1; stamp(P, "t")
    for k in range(2):
        Q = []
        reduce_unit(Q, k, src(k), vo)
        w = [i for i in Q if i.txt == "WAIT"]
        for i, x in enumerate(w): x.vm = (13 - i) if k == 0 else (7 - i)
        P += Q
    L(P, "L_fin:")
    if OPT["stamps"]:
        stamp(P, OPT["stamps"][0])
        ns = G.nstamp
        L(P, f"""
s_waitcnt vmcnt(0)
s_cmp_lg_u32 s3, 0
s_cbranch_scc1 L_end
s_mov_b32 s{sWs}, s18
s_and_b32 s{sWs+1}, s19, 0xffff
s_mov_b32 s{sWs+2}, 0x10000000
s_mul_i32 s{sTmp}, s2, {ns*16}
s_add_u32 s{sTmp}, s{sTmp}, 0x8000000
v_mov_b32 v10, s{sTmp}
s_mov_b64 exec, 1
v_mov_b32 v17, 0
v_mov_b32 v19, 0
""")
        for j in range(ns):
            L(P, f"v_mov_b32 v16, s{STAMPS[j]}\nv_mov_b32 v18, s{STAMPS[j]+1}\n"
                 f"buffer_store_dwordx4 v[16:19], v10, {srd(sWs)}, 0 offen offset:{16*j}\ns_nop 1")

def clr_wait(R):
    L(R, f"""
L_clr_wait:
s_sleep 4
buffer_load_dword v{SPARE+11}, v{SPARE+10}, {srd(sDbg)}, 0 offen sc1
s_waitcnt vmcnt(0)
v_readfirstlane_b32 s{sOk}, v{SPARE+11}
s_nop 1
s_cmp_lt_u32 s{sOk}, 8
s_cbranch_scc1 L_clr_wait
s_branch L_clr_ok
""")

def main():
    P = []; R = []
    prologue(P)
    phase1_and_qk0(P)
    stamp(P, "m")
    init_path(P)
    for j in range(15): block(P, R, j)
    stamp(P, "m")
    phase2b(P, R)
    final(P)
    resolve_waits(P)
    errs = check(P, "main")
    for nm, p, last in (("0", 0, False), ("1", 1, False), ("last", 1, True)):
        Q = []; rescale(Q, nm, p, last); errs += check(Q, "resc"); R += Q
    clr_wait(R)
    for e in errs[:30]: print("HAZARD", e, file=sys.stderr)
    txt = f"""; fused GQA block: Q projection, attention, output projection, cross-workgroup reduce
; @launch grid=(256,1,1) block=(256,1,1) lds=163840
.amdgcn_target "amdgcn-amd-amdhsa--gfx950"
.text
.globl {KN}
.p2align 8
.type {KN},@function
{KN}:
"""
    txt += "\n".join(i.txt for i in P)
    txt += "\nL_end:\ns_endpgm\n"
    txt += "\n".join(i.txt for i in R)
    txt += f"""
s_endpgm
.section .rodata,"a"
.p2align 6
.amdhsa_kernel {KN}
  .amdhsa_next_free_vgpr 512
  .amdhsa_next_free_sgpr 102
  .amdhsa_accum_offset 256
  .amdhsa_group_segment_fixed_size 0
  .amdhsa_kernarg_size 64
  .amdhsa_user_sgpr_count 2
  .amdhsa_user_sgpr_kernarg_segment_ptr 1
  .amdhsa_system_sgpr_workgroup_id_x 1
  .amdhsa_float_denorm_mode_32 3
.end_amdhsa_kernel
"""
    open(sys.argv[1], "w").write(txt)
    print("instructions:", len(P), "stamps:", G.nstamp, "hazards:", len(errs), file=sys.stderr)

main()
```

```python
import sys, math, struct
from asmlib import *

KN = "standalone__gqa_block_cached__near_ridge_kernel"
OPT = dict(stamps="", nt_kv=True, nt_x=False, nt_w=False, pretouch=True, map2=True, xlead=4, zero="",
           codepf=True, out_flag="", kvs=7, xfirst=2, tlb=True, wqsp=3, ptat=7, npair=6,
           sleep=2, nd=0, kend=24, per2a=3, nostage=True, big=True, bar2a=2, early=True, amp=-1, ampk=1)
for a in sys.argv[2:]:
    k, v = a.split("=")
    assert k in OPT, k
    OPT[k] = type(OPT[k])(int(v)) if not isinstance(OPT[k], str) else v

def f2u(f): return struct.unpack("<I", struct.pack("<f", f))[0]
CSCALE = math.log2(math.e) / 16.0
THRESH = 8.0
KS = 16896
def KP(j): return ((j % 9) + 2) % 9 * KS
WA = [0, 16384, 101376, 117760, 134144]
NR = 5
def wslot(s): return (s + 4) % NR
XU = [33792 + 12288 * u for u in range(5)] + [150528, 33792]
X1 = 131072
FLAG0 = 32 << 20
NP = OPT["npair"]
STG = [("p", k) for k in range(NP)] + [(0, st) for st in range(NP // 2, 7)] + [(1, st) for st in range(NP // 2, 7)] + \
      [(2, st) for st in range(7)] + [(3, st) for st in range(7)]
assert len(STG) == 28 and NP % 2 == 0
def unit_of(s, hi):
    t, k = STG[s]
    return (hi, k) if t == "p" else (t, 2 * k + hi)
XNEED = {}; DONE = {}
for _s in range(27, -1, -1):
    for _h in range(2): XNEED[unit_of(_s, _h)[1]] = _s
for _s in range(28):
    for _h in range(2): DONE[unit_of(_s, _h)[0]] = 24 * (_s + 1)
ITEMS = [("V", 0, _q) for _q in range(4)]
for _c in (1, 2):
    _w = [("W", _c - 1, _p) for _p in range(7)]
    ITEMS += [("V", _c, 0)] + _w[0:2] + [("V", _c, 1)] + _w[2:4] + [("V", _c, 2)] + _w[4:5] + [("V", _c, 3)] + _w[5:7]
ND = OPT["nd"]
_w = [("W", 2, _p) for _p in range(7)]
_cut = [0, (ND + 2) // 3, (2 * ND + 2) // 3, ND]
for _q in range(4): ITEMS += [("V", 3, _q)] + (_w[_cut[_q]:_cut[_q + 1]] if _q < 3 else _w[ND:ND + 3])
for _p in range(7): ITEMS += ([_w[_p]] if _p >= ND + 3 else []) + [("W", 3, _p)]
assert len(ITEMS) == 44 and len(set(ITEMS)) == 44
RB = 8
NT_KV = " nt" if OPT["nt_kv"] else ""
NT_X = " nt" if OPT["nt_x"] else ""
NT_W = " nt" if OPT["nt_w"] else ""

sFl, sPT = 4, 12
sX, sK, sV, sWq, sWo, sWs, sDbg, sOut = 20, 24, 28, 32, 36, 40, 44, 48
sB, sH, sRot, sC, sT, sKVm, sWqm, sWom = 52, 53, 54, 55, 56, 57, 58, 59
sWqOff = 60
sTmp, sVw, sOk = 67, 68, 69
sTo = 70
sMask = 74
sCg, sTmp2, sSt, sWoW = 76, 77, 78, 79
sU = 80
sHo, sHm = 82, 83
sXOff, sXm = 84, 91
sSrc = 84
sRet = 94
STAMPS = [96, 98, 100, 8, 16, 0, 22, 20]
def srd(d): return f"s[{d}:{d+3}]"
vK, vMx, vDv, vDw = 1, 2, 3, 4
vXw, vXr_ = 1, 2
vD = 5
vRl = 5
vT = 8
vR = [9, 15]
vA = 10
vL16 = 14
SB = [16, 40]
NEGM = 64
SPARE = 76
PB = 88
ACC1 = [16, 64, 112, 64]
FR1 = 160
NF1 = 12
KREG = {4: 'v208', 5: 'a72', 6: 'v228'}
vKw = 245
vW = 224
vXo = 228
vXr = 232
vPT = 234
vT1 = 244
DUMMY = 236
vA2 = 246
vXr2 = 252
vFc = 112
OF3 = 136
vSel = 216
OWN = 184
EP = 196
vFl, vFs, vPoll = 212, 213, 214
aQ = 0
aX = 88
aOut = 0
aT0 = 96
aFR = 168
aL, aOnes = 232, 244
aOF = 208
NF2 = 10
def vr(b, n=4): return f"v[{b}:{b+n-1}]"
def ar(b, n=4): return f"a[{b}:{b+n-1}]"
def Qf(rt, ds): return ar(aQ + 4 * (ds * 3 + rt))
def Xf(slot, rt): return ar(aX + 4 * (slot * 3 + rt))
def Sreg(buf, rt, T): return SB[buf] + rt * 8 + T * 4
def Preg(j, rt): return PB + 12 * j + 4 * rt if j < 14 else Sreg(j & 1, rt, 0)
def Otile(dt, rt): return [NEGM + 4 * rt, SPARE + 4 * rt, Sreg(0, rt, 1), Sreg(1, rt, 1)][dt]
def FR(fi): return aFR + 4 * (fi % 16 if fi < 256 else (fi - 256) % NF2)
MF = "v_mfma_f32_16x16x32_bf16"

class G: nstamp = 0
def stamp(P, kind):
    if not any(c in OPT["stamps"] for c in kind): return
    j = G.nstamp; G.nstamp += 1
    P += [Ins("s_memrealtime s[92:93]"), Ins("s_waitcnt lgkmcnt(0)"), Ins(f"s_mov_b32 s{STAMPS[j]}, s92"),
          Ins("s_memtime s[92:93]"), Ins("s_waitcnt lgkmcnt(0)"), Ins(f"s_mov_b32 s{STAMPS[j]+1}, s92")]

def L(P, s):
    for line in s.strip().split("\n"):
        line = line.strip()
        if line: P.append(Ins(line))
def items(txt, e, d):
    return [Item(Ins(x.strip(), cost=2 if x.strip().startswith(("buffer", "v_rcp", "v_exp")) else 1), e, d) for x in txt.strip().split("\n") if x.strip()]

def spaced(lst, its, e0, dmax, sp, lo=0):
    k = 0
    for x in its:
        e = min(e0 + int(sp * k), dmax)
        if x[0].kind == "vmem":
            lst.append(Item(x, e, min(e + 1, dmax))); k += 1
        else:
            lst.append(Item(x, lo, max(e - 1, -1)))

def inline(P, grp):
    for x in grp:
        P += x
        if " m0," in x[-1].txt: P.append(Ins("s_nop 0"))

def wq_dma(s):
    r = []
    t, k = STG[s]
    if t == "p":
        so = sWqOff + (k >> 1)
        if k & 1:
            r.append([Ins(f"s_add_u32 s{sTmp2}, s{so}, 262144")]); so = sTmp2
    else:
        so = sWqOff + k
        if STG[s - 1][0] != t:
            r.append([Ins(f"s_lshl_b32 s{sTmp}, s{sU+1}, 18")])
            r.append([Ins(f"s_add_u32 s{sTmp}, s{sTmp}, {128*t}")])
            r.append([Ins(f"s_add_u32 s{sWq}, s10, s{sTmp}"), Ins(f"s_addc_u32 s{sWq+1}, s11, 0")])
    r.append([Ins(f"s_add_u32 m0, s{sWqm}, {WA[wslot(s)]}")])
    for ch in range(4):
        r.append([Ins(f"buffer_load_dwordx4 v{vW+ch}, {srd(sWq)}, s{so} offen offset:{ch*1024}{NT_W} lds", cost=2, tag=f"wq{s}")])
    return r

def x_dma(u):
    r = [[Ins(f"s_add_u32 m0, s{sXm}, {XU[u]}")]]
    for i in range(3):
        r.append([Ins(f"buffer_load_dwordx4 v{vXo+i}, {srd(sX)}, s{sXOff+u} offen offset:{i*1024}{NT_X} lds", cost=2, tag=f"x{u}")])
    return r

def k_dma(j, ks=range(4)):
    r = [[Ins(f"s_add_u32 s{sHm}, s{sHo}, {j*16384}")], [Ins(f"s_add_u32 m0, s{sKVm}, {KP(j)}")]]
    for k in ks:
        r.append([Ins(f"buffer_load_dwordx4 v{vD+k}, {srd(sK)}, s{sHm} offen offset:{k*1056}{NT_KV} lds", cost=2, tag=f"K{j}")])
    return r

def kreg(j, k):
    f, b = KREG[j][0], int(KREG[j][1:]) + 4 * k
    return f"{f}[{b}:{b+3}]"
def k_load(j, k):
    return [[Ins(f"s_add_u32 s{sHm}, s{sHo}, {j*16384 + 96}")],
            [Ins(f"buffer_load_dwordx4 {kreg(j, k)}, v{vL16}, {srd(sK)}, s{sHm} offen offset:{k*1024}{NT_KV}", cost=2, tag=f"K{j}")]]
def paced(groups, i0, i1):
    r = []
    for gi in range(i0 // 4, (i1 + 3) // 4):
        if gi >= len(groups): break
        grp = groups[gi]; ns = len(grp) - 4
        ks = [k for k in range(4) if i0 <= 4 * gi + k < i1]
        if ks: r += (grp[:ns] if (ks[0] == 0 or grp[0][0].txt.split()[1].startswith(f"s{sHm}")) else grp[ns-1:ns]) + [grp[ns + k] for k in ks]
    return r

def item_dma(n):
    t, c, i = ITEMS[n]
    r = []
    if t == "V":
        for ch in range(4): r.append([Ins(f"s_add_u32 s{sTo+ch}, s{sVw}, {i*65536 + c*128 + (0, -512, 6144, 5632)[ch] + 512}")])
        r.append([Ins(f"s_add_u32 m0, s{sWqm}, {(n % RB) * 16384}")])
        for ch in range(4):
            r.append([Ins(f"buffer_load_dwordx4 v{vDv}, {srd(sV)}, s{sTo+ch} offen offset:{ch*1024}{NT_KV} lds", cost=2, tag=f"n{n}")])
    else:
        for ch in range(4): r.append([Ins(f"s_add_u32 s{sTo+ch}, s{sWqOff+i}, {c*64*896 + ch*6144}")])
        r.append([Ins(f"s_add_u32 m0, s{sWom}, {(n % RB) * 16384}")])
        for ch in range(4):
            r.append([Ins(f"buffer_load_dwordx4 v{vDw}, {srd(sWo)}, s{sTo+ch} offen offset:{ch*1024}{NT_W} lds", cost=2, tag=f"n{n}")])
    return r

def STREAM2A(): return [k_dma(j) for j in range(7, 16)] + [item_dma(n) for n in range(RB)]

def mksrd(d, base, add, size, neg=None):
    if {sK: "k", sV: "k", sWq: "q", sX: "x", sWo: "o"}.get(d, "-") in OPT["zero"]: size = 0
    t = f"s_add_u32 s{d}, s{base}, {add}\ns_addc_u32 s{d+1}, s{base+1}, {neg or 0}\ns_and_b32 s{d+1}, s{d+1}, 0xffff\n"
    return t + f"s_mov_b32 s{d+2}, {size}\ns_mov_b32 s{d+3}, 0x20000\n"

def prologue(P):
    if OPT["stamps"]: L(P, "s_memrealtime s[92:93]\ns_memtime s[94:95]")
    L(P, "s_cmp_ge_u32 s2, 256\ns_cbranch_scc1 L_end\ns_load_dwordx16 s[4:19], s[0:1], 0")
    if OPT["codepf"]:
        L(P, """s_getpc_b64 s[20:21]
L_pc:
s_lshr_b32 s22, s2, 3
v_lshl_add_u32 v250, v0, 5, s22
v_lshlrev_b32 v250, 7, v250
v_min_u32 v250, (L_end-L_pc), v250
global_load_dword v251, v250, s[20:21]""")
    L(P, f"v_lshrrev_b32 v{vT1}, 6, v0\nv_and_b32 v0, 63, v0")
    if OPT["map2"]:
        L(P, f"""s_lshr_b32 s{sB}, s2, 4
v_readfirstlane_b32 s3, v{vT1}
s_lshl_b32 s{sTmp}, s2, 2
s_and_b32 s{sTmp}, s{sTmp}, 16
s_add_u32 s{sB}, s{sB}, s{sTmp}
s_and_b32 s{sH}, s2, 3
s_lshl_b32 s{sH}, s{sH}, 1
s_bfe_u32 s{sTmp}, s2, 0x10003
s_add_u32 s{sH}, s{sH}, s{sTmp}""")
    else:
        L(P, f"s_lshr_b32 s{sB}, s2, 3\nv_readfirstlane_b32 s3, v{vT1}\ns_and_b32 s{sH}, s2, 7")
    a, b, c = DUMMY, DUMMY + 1, DUMMY + 2
    L(P, f"""
s_mul_i32 s{sTmp}, s{sB}, 37
s_lshr_b32 s{sTmp}, s{sTmp}, 8
s_mul_i32 s{sTmp}, s{sTmp}, 7
s_sub_u32 s{sRot}, s{sB}, s{sTmp}
v_lshlrev_b32 v{vL16}, 4, v0
v_lshrrev_b32 v{a}, 1, v0
v_lshrrev_b32 v{b}, 4, v0
v_xor_b32 v{a}, v{a}, v{b}
v_and_b32 v{a}, 3, v{a}
v_lshrrev_b32 v{b}, 1, v{a}
v_lshlrev_b32 v{b}, 2, v{b}
v_and_b32 v{c}, 1, v{a}
v_or_b32 v{b}, v{b}, v{c}
v_and_b32 v{c}, 1, v0
v_lshl_or_b32 v{b}, v{c}, 1, v{b}
v_lshlrev_b32 v{b}, 4, v{b}
v_lshl_or_b32 v{vDw}, v{a}, 1, v{c}
v_bfe_u32 v{c}, v0, 3, 2
v_lshl_add_u32 v{b}, v{c}, 13, v{b}
v_lshrrev_b32 v{c}, 5, v0
v_lshl_add_u32 v{vW}, v{c}, 16, v{b}
v_add_u32 v{vW+1}, {4*8192-1024}, v{vW}
v_add_u32 v{vW+2}, {16*8192-2048}, v{vW}
v_add_u32 v{vW+3}, {20*8192-3072}, v{vW}
s_and_b32 s{sU}, s3, 1
s_lshr_b32 s{sU+1}, s3, 1
s_lshl_b32 s{sHo}, s{sU}, 9
s_lshl_b32 s{sWqm}, s3, 12
s_mul_i32 s{sXm}, s3, 3072
s_mul_i32 s{sTmp}, s3, 24
v_lshrrev_b32 v{a}, 3, v0
v_add_u32 v{a}, s{sTmp}, v{a}
v_and_b32 v{c}, 7, v0
""")
    for i in range(3):
        L(P, f"""
v_bfe_u32 v{b}, v{a}, 1, 3
v_xor_b32 v{b}, v{b}, v{c}
v_lshlrev_b32 v{b}, 4, v{b}
v_mul_u32_u24 v{vXo+i}, 896, v{a}
v_add_u32 v{vXo+i}, v{vXo+i}, v{b}
""")
        if i: L(P, f"v_subrev_u32 v{vXo+i}, {1024*i}, v{vXo+i}")
        if i < 2: L(P, f"v_add_u32 v{a}, 8, v{a}")
    L(P, f"s_mov_b32 s{sCg}, s{sRot}")
    def koff(st):
        L(P, f"""
s_lshl_b32 s{sWqOff+st}, s{sCg}, 19
s_add_u32 s{sWqOff+st}, s{sWqOff+st}, s{sHo}
s_lshl_b32 s{sXOff+st}, s{sCg}, 7
s_add_u32 s{sCg}, s{sCg}, 1
s_cmp_eq_u32 s{sCg}, 7
s_cselect_b32 s{sCg}, 0, s{sCg}
""")
    koff(0); koff(1)
    L(P, f"""
s_lshl_b32 s{sTmp}, s{sH}, 10
s_lshl_b32 s{sTmp2}, s{sU+1}, 7
s_mul_i32 s{sSt}, s{sB}, 86016
s_waitcnt lgkmcnt(0)
""")
    if OPT["stamps"]:
        L(P, f"s_mov_b32 s{STAMPS[0]}, s92\ns_mov_b32 s{STAMPS[0]+1}, s94"); G.nstamp = 1
    stamp(P, "a")
    L(P, f"s_add_u32 s10, s10, s{sTmp}\ns_addc_u32 s11, s11, 0\ns_and_b32 s11, s11, 0xffff")
    L(P, mksrd(sWq, 10, f"s{sTmp2}", 447 * 8192 + 640))
    inline(P, wq_dma(0))
    L(P, mksrd(sX, 4, f"s{sSt}", 86016))
    inline(P, x_dma(0))
    a, b, c = 208, 209, 210
    L(P, f"""
v_bfe_u32 v{a}, v0, 2, 3
v_and_b32 v{c}, 3, v0
v_lshlrev_b32 v{b}, 7, v{a}
v_lshl_add_u32 v{b}, v{c}, 3, v{b}
v_lshrrev_b32 v{c}, 5, v0
v_lshl_add_u32 v{b}, v{c}, 11, v{b}
s_lshl_b32 s{sTmp}, s{sU}, 12
v_add_u32 v{b}, s{sTmp}, v{b}
v_lshrrev_b32 v{a}, 1, v{a}
""")
    for t in range(4):
        L(P, f"v_xor_b32 v{c}, {t}, v{a}\nv_lshl_add_u32 v{vA+t}, v{c}, 5, v{b}\nv_add_u32 v{vA2+t}, {WA[2]}, v{vA+t}")
    L(P, f"""
v_and_b32 v{a}, 15, v0
v_lshlrev_b32 v{b}, 7, v{a}
s_mul_i32 s{sTmp}, s{sU+1}, 6144
s_add_u32 s{sTmp}, s{sTmp}, {XU[0]}
v_add_u32 v{b}, s{sTmp}, v{b}
v_lshrrev_b32 v{a}, 1, v{a}
v_lshrrev_b32 v{c}, 4, v0
v_xor_b32 v{a}, v{a}, v{c}
v_lshl_add_u32 v{vXr}, v{a}, 4, v{b}
v_xor_b32 v{a}, 4, v{a}
v_lshl_add_u32 v{vXr+1}, v{a}, 4, v{b}
v_add_u32 v{vXr2}, {XU[5]-XU[0]}, v{vXr}
v_add_u32 v{vXr2+1}, {XU[5]-XU[0]}, v{vXr+1}
""")
    inline(P, wq_dma(1))
    for st in range(2, 7): koff(st)
    L(P, f"""
s_lshl_b32 s{sTmp}, s{sB}, 3
s_add_u32 s{sTmp}, s{sTmp}, s{sH}
s_lshl_b32 s{sCg}, s{sTmp}, 18
s_sub_u32 s{sTmp}, s{sCg}, 96
s_cselect_b32 s{sTmp2}, -1, 0
""")
    L(P, mksrd(sK, 6, f"s{sTmp}", 262144 + 96, f"s{sTmp2}"))
    L(P, f"s_sub_u32 s{sTmp}, s{sCg}, 512\n" + mksrd(sV, 8, f"s{sTmp}", 262144 + 512, f"s{sTmp2}"))
    inline(P, x_dma(1) + wq_dma(2))
    L(P, f"s_mul_i32 s{sTmp}, s{sH}, 458752\n" + mksrd(sWo, 12, f"s{sTmp}", 458752))
    L(P, f"s_mul_i32 s{sTmp}, s{sB}, 688128\n" + mksrd(sWs, 18, f"s{sTmp}", 688128))
    L(P, mksrd(sOut, 14, f"s{sSt}", 86016) + mksrd(sDbg, 16, 0, 256))
    L(P, f"""
s_mov_b32 s{sC}, {hex(f2u(CSCALE))}
s_mov_b32 s{sT}, {hex(f2u(THRESH))}
s_mul_i32 s{sKVm}, s3, 4224
s_lshl_b32 s{sHo}, s3, 12
s_lshl_b32 s{sVw}, s3, 14
s_lshl_b32 s{sWom}, s{sU}, 13
s_lshl_b32 s{sTmp}, s{sU+1}, 12
s_add_u32 s{sWom}, s{sWom}, s{sTmp}
s_mul_i32 s{sWoW}, s{sU}, {256*896}
s_mul_i32 s{sTmp}, s{sU+1}, {32*896}
s_add_u32 s{sWoW}, s{sWoW}, s{sTmp}
v_add_u32 v{vD}, 96, v{vL16}
v_add_u32 v{vD+1}, 64, v{vL16}
v_add_u32 v{vD+2}, 32, v{vL16}
v_mov_b32 v{vD+3}, v{vL16}
v_and_b32 v{a}, 7, v0
v_mul_u32_u24 v{a}, 1056, v{a}
v_bfe_u32 v{b}, v0, 3, 1
v_lshl_add_u32 v{a}, v{b}, 9, v{a}
v_lshrrev_b32 v{b}, 4, v0
v_lshl_add_u32 v{a}, v{b}, 4, v{a}
v_add_u32 v{vK}, {KP(0)}, v{a}
s_add_u32 s{sTmp}, s{sKVm}, {KP(4)}
v_add_u32 v{vKw}, s{sTmp}, v{vL16}
v_lshlrev_b32 v{b}, 4, v{vDw}
v_lshrrev_b32 v{a}, 3, v0
v_lshl_add_u32 v{vDv}, v{a}, 10, v{b}
v_mul_u32_u24 v{a}, 896, v{a}
v_add_u32 v{vDw}, v{a}, v{b}
""")
    inline(P, wq_dma(3))
    for u in range(2, OPT["xfirst"]): inline(P, x_dma(u))
    if OPT["pretouch"]:
        n = 16 if OPT["map2"] else 32
        rows = 448 // n
        L(P, f"""
s_and_b32 s{sTmp}, s{sB}, {n-1}
s_mul_i32 s{sTmp}, s{sTmp}, {rows}
s_lshl_b32 s{sTmp2}, s3, 3
s_add_u32 s{sTmp2}, s{sTmp2}, s{sTmp}
s_add_u32 s{sTmp}, s{sTmp}, {rows-1}
v_lshrrev_b32 v{a}, 3, v0
v_add_u32 v{a}, s{sTmp2}, v{a}
v_min_u32 v{a}, s{sTmp}, v{a}
v_lshlrev_b32 v{a}, 13, v{a}
v_and_b32 v{b}, 7, v0
v_or_b32 v{b}, 2, v{b}
v_lshl_add_u32 v{vPT}, v{b}, 7, v{a}
""")
        L(P, mksrd(sPT, 10, 0, 447 * 8192 + 1024))
    L(P, f"""
s_lshl_b32 s{sTmp}, s{sB}, 2
s_add_u32 s{sTmp}, s{sTmp}, s3
s_lshl_b32 s{sTmp}, s{sTmp}, 7
s_add_u32 s{sTmp}, s{sTmp}, {FLAG0}
""" + mksrd(sFl, 18, f"s{sTmp}", 32) + f"""
s_lshl_b32 s{sTmp}, s{sH}, 2
v_lshlrev_b32 v{a}, 12, v0
v_add_u32 v{vFc}, s{sTmp}, v{a}
v_mov_b32 v{vFc+1}, 0
""")
    P.append(Ins(f"buffer_store_dword v{vFc+1}, v{vFc}, {srd(sFl)}, 0 offen sc1", tag="clr"))
    if OPT["tlb"]:
        L(P, f"v_mov_b32 v{a}, 512")
        for i, d in enumerate((sK, sV, sWo, sWs, sOut)):
            P.append(Ins(f"buffer_load_dword v{DUMMY+i}, v{a}, {srd(d)}, 0 offen"))

def q_epilogue(dg, win, sA, sB_, sC_):
    base = ACC1[dg]
    u = 0
    for e in range(2):
        for rt in range(3):
            e0, d0 = win(u); u += 1
            A = base + ((2 * e) * 3 + rt) * 4; B = base + ((2 * e + 1) * 3 + rt) * 4
            for k in range(4): sA.append(Item(Ins(f"v_mul_f32 v{A+k}, s{sC}, v{A+k}"), e0, d0 - 4))
            for k in range(4): sA.append(Item(Ins(f"v_mul_f32 v{B+k}, s{sC}, v{B+k}"), e0, d0 - 4))
            cv = [Item(Ins(x), e0, d0 - 3) for x in (
                  f"v_cvt_pk_bf16_f32 v{A}, v{A}, v{A+1}", f"v_cvt_pk_bf16_f32 v{B}, v{B}, v{B+1}",
                  f"v_cvt_pk_bf16_f32 v{A+1}, v{A+2}, v{A+3}", f"v_cvt_pk_bf16_f32 v{B+1}, v{B+2}, v{B+3}")]
            sA += cv
            sw = [Item(Ins(f"v_permlane16_swap_b32 v{A}, v{B}", cost=2), e0, d0 - 1, deps=cv, lag=2),
                  Item(Ins(f"v_permlane16_swap_b32 v{A+1}, v{B+1}", cost=2), e0, d0 - 1, deps=cv, lag=2)]
            sB_ += sw
            q = aQ + 4 * ((2 * dg + e) * 3 + rt)
            for dst, src, dep in ((q, A, 0), (q + 2, B, 0), (q + 1, A + 1, 1), (q + 3, B + 1, 1)):
                sC_.append(Item(Ins(f"v_accvgpr_write_b32 a{dst}, v{src}"), e0, d0, deps=[sw[dep]]))

def kread(fi, ds, T):
    return Ins(f"ds_read_b128 {ar(FR(fi))}, v{vK} offset:{T*8448 + ds*64}", tag=f"f{fi}")
def kstep(j):
    d = KP(j + 1) - KP(j)
    return f"v_add_u32 v{vK}, {d}, v{vK}" if d > 0 else f"v_subrev_u32 v{vK}, {-d}, v{vK}"

def rdl(s, f):
    if s == 0: return -1 if f < 4 else 2 * f - 6
    return 24 * s + min(3 * (f & 6) - 7 + (2 if f >= 2 else 0), 7)

def phase1_and_qk0(P):
    M = []
    for s in range(28):
        for f in range(8):
            hi, t = f >> 2, f & 3
            dg, slot = unit_of(s, hi)
            for rt in range(3):
                acc = vr(ACC1[dg] + (t * 3 + rt) * 4)
                M.append(Ins(f"{MF} {acc}, {vr(FR1 + 4*((8*s+f) % NF1))}, {Xf(slot, rt)}, {'0' if slot == 0 else acc}"))
    n1 = len(M)
    for ds in range(8):
        for T in range(2):
            for rt in range(3):
                acc = vr(Sreg(0, rt, T))
                M.append(Ins(f"{MF} {acc}, {ar(FR(2*ds+T))}, {Qf(rt, ds)}, {'0' if ds == 0 else acc}"))
    sync, reads, dma, epi, epi2, epi3, misc = [], [], [], [], [], [], []
    plan = {}
    xrd_at = {k: max(XNEED[k] - 1, 0) for k in range(14)}
    xw_at = {u: xrd_at[2 * u] for u in range(7)}
    xfree = {u: xrd_at[2 * u + 1] + 2 for u in range(7)}
    last = -1
    for u in range(OPT["xfirst"], 7):
        last = max(xw_at[u] - OPT["xlead"], last + 1, xfree[0] if u == 6 else 0)
        assert last < xw_at[u]
        plan[last] = x_dma(u)
    if OPT["pretouch"]: plan.setdefault(OPT["ptat"], []).append([Ins(f"buffer_load_dword v{DUMMY+6}, v{vPT}, {srd(sPT)}, 0 offen", cost=2)])
    tiles = [(4, 0), (5, 0), (1, xfree[2]), (2, xfree[4]), (3, xfree[4]), (6, 11), (0, xfree[6])]
    if OPT["nostage"]: tiles = [t for t in tiles if t[0] < 4]
    nl = 4 * len(tiles)
    for i in range(nl):
        j, fr = tiles[i // 4]
        s0 = OPT["kvs"] + (i * (OPT["kend"] + 1 - OPT["kvs"])) // nl
        assert fr <= s0 < 25, (j, fr, s0)
        plan.setdefault(s0, []).extend(k_load(j, i % 4) if j in KREG else k_dma(j, [i % 4]))
    wr = []
    for j, s0 in ((4, 25), (5, 26), (6, 27)):
        if OPT["nostage"]: plan[s0] = k_dma(j); continue
        sync.append(Item(W(vm=f"K{j}"), 24 * s0 - 12, 24 * s0 - 12))
        for k in range(4):
            wr.append(Item(Ins(f"ds_write_b128 v{vKw}, {kreg(j, k)} offset:{KP(j) - KP(4) + k*1056}"), 24 * s0 - 11, 24 * s0 + 10))
    plan[28] = paced(STREAM2A(), 0, OPT["per2a"])
    for s in range(29):
        g0 = max(24 * s - 13, -1)
        if s < 28: tg = [f"wq{s}"] + [f"x{u}" for u in range(7) if xw_at[u] == s]
        else: tg = ["K1", "K0"]
        xs = []
        if s in (0, 6, 14, 28): stamp(xs, "a")
        sync.append(Item([W(vm=tg, lg=f"w{8*s-1}" if s > 0 else None), Ins("s_barrier")] + xs, g0, g0))
        if s < 28:
            def xrd(slot, d):
                u = slot >> 1
                for rt in range(3):
                    off = (0 if u == 5 else XU[u] - XU[0]) + rt * 2048
                    reads.append(Item(Ins(f"ds_read_b128 {Xf(slot, rt)}, v{(vXr2 if u == 5 else vXr) + (slot & 1)} offset:{off}", tag=f"xr{slot}"), g0, d))
            if s == 0: xrd(0, -1)
            for f in range(8):
                hi, t = f >> 2, f & 3
                F = 8 * s + f
                b = FR1 + 4 * (F % NF1)
                ws_ = wslot(s)
                off = WA[ws_] - (WA[2] if ws_ >= 2 else 0) + hi * 8192
                va = (vA2 if ws_ >= 2 else vA) + t
                reads.append(Item(Ins(f"ds_read_b64_tr_b16 {vr(b,2)}, v{va} offset:{off}", tag=f"w{F}x"), g0, rdl(s, f)))
                reads.append(Item(Ins(f"ds_read_b64_tr_b16 {vr(b+2,2)}, v{va} offset:{off+1024}", tag=f"w{F}"), g0, rdl(s, f)))
            for k in range(1, 14):
                if xrd_at[k] == s: xrd(k, 24 * s + 10)
            sync.append(Item(W(lg=f"w{8*s+1}"), 24 * s - 1, 24 * s - 1))
            sync.append(Item(W(lg=f"w{8*s+3}"), 24 * s + 5, 24 * s + 5))
        else:
            for fi in range(16):
                first = n1 + 3 * fi
                reads.append(Item(kread(fi, fi >> 1, fi & 1), max(first - 15, g0 + 1), first - (first - n1) % 6 - 6))
            for i in range(8):
                sync.append(Item(W(lg=f"f{2*i+1}"), n1 + 6 * i - 1, n1 + 6 * i - 1))
        grp = (wq_dma(s + NR - 1) if s + NR - 1 < 28 else []) + plan.get(s, [])
        if s == 0: spaced(dma, grp, 0, 10, 1.5, lo=-1)
        elif s < 28: spaced(dma, grp, 24 * s - 12, 24 * s + 11, OPT["wqsp"])
        else: spaced(dma, grp, 24 * s - 11, n1 + 46, 3)
    lim = {0: n1 - 2, 1: DONE[2] - 2, 2: n1 + 21, 3: n1 + 33}
    for dg in range(4):
        e0 = DONE[dg] + 2
        win = lambda u: (e0 + (0 if u < 3 else 3), lim[dg] - ((5 - u) * 8 if dg < 3 else (2 - u % 3) * 2 - (6 if u >= 3 else 0)))
        q_epilogue(dg, win, epi, epi2, epi3)
    txt = f"s_mov_b32 s{sCg}, s{sRot}\n"
    for i in range(7):
        misc += items(txt + f"s_lshl_b32 s{sTmp}, s{sCg}, 7\ns_add_u32 s{sWqOff+i}, s{sTmp}, s{sWoW}\ns_add_u32 s{sCg}, s{sCg}, 1", 24 * 24, n1)
        misc.append(Item([Ins(f"s_cmp_eq_u32 s{sCg}, 7"), Ins(f"s_cselect_b32 s{sCg}, 0, s{sCg}")], 24 * 24, n1)); txt = ""
    misc.append(Item(Ins(f"v_mov_b32 v{vT1}, 0x3f803f80"), n1 + 10, n1 + 44))
    for k in range(4): misc.append(Item(Ins(f"v_accvgpr_write_b32 a{aOnes+k}, v{vT1}"), n1 + 10, n1 + 45))
    misc.append(Item(Ins(kstep(0)), n1 + 43, n1 + 45))
    P += schedule(M, sync, [tighten(reads), tighten(dma), tighten(wr), tighten(epi2), tighten(epi3), tighten(epi), tighten(misc)], name="p1", verbose=True)

def init_path(P):
    for fi in range(4): P.append(kread(16 + fi, fi >> 1, fi & 1))
    P += [W(vm=["K2", "K3"]), Ins("s_barrier")]
    X = SPARE
    for rt in range(3):
        s = Sreg(0, rt, 0)
        L(P, f"v_max3_f32 v{X+rt}, v{s}, v{s+1}, v{s+2}\nv_max3_f32 v{X+rt}, v{X+rt}, v{s+3}, v{s+4}\n"
             f"v_max3_f32 v{X+rt}, v{X+rt}, v{s+5}, v{s+6}\nv_max_f32 v{X+rt}, v{X+rt}, v{s+7}")
    for sw in ("v_permlane32_swap_b32", "v_permlane16_swap_b32"):
        for rt in range(3): L(P, f"v_mov_b32 v{X+3+rt}, v{X+rt}")
        for rt in range(3): L(P, f"{sw} v{X+rt}, v{X+3+rt}")
        for rt in range(3): L(P, f"v_max_f32 v{X+rt}, v{X+rt}, v{X+3+rt}")
    for rt in range(3):
        for k in range(4): L(P, f"v_sub_f32 v{NEGM+4*rt+k}, 0, v{X+rt}")
    for rt in range(3):
        s = Sreg(0, rt, 0)
        for k in range(8): L(P, f"v_sub_f32 v{s+k}, v{s+k}, v{X+rt}")

def rescale(R, name, p, last):
    L(R, f"L_resc_{name}:\ns_nop 7\ns_nop 1\ns_mov_b32 s{sTmp}, 0xffff0000")
    X = SPARE
    for rt in range(3):
        s = Sreg(p, rt, 0); o = Sreg(1 - p, rt, 0)
        L(R, f"v_max3_f32 v{X}, v{s}, v{s+1}, v{s+2}\nv_max3_f32 v{X}, v{X}, v{s+3}, v{s+4}\n"
             f"v_max3_f32 v{X}, v{X}, v{s+5}, v{s+6}\nv_max3_f32 v{X}, v{X}, v{s+7}, 0")
        for sw in ("v_permlane32_swap_b32", "v_permlane16_swap_b32"):
            L(R, f"v_mov_b32 v{X+1}, v{X}\ns_nop 1\n{sw} v{X}, v{X+1}\nv_max_f32 v{X}, v{X}, v{X+1}")
        L(R, f"v_ceil_f32 v{X}, v{X}\nv_sub_f32 v{X+1}, 0, v{X}\nv_max_f32 v{X+1}, 0xc3480000, v{X+1}\nv_cvt_i32_f32 v{X+1}, v{X+1}\n"
             f"v_ldexp_f32 v{X+1}, 1.0, v{X+1}")
        for k in range(8): L(R, f"v_sub_f32 v{s+k}, v{s+k}, v{X}")
        for k in range(4): L(R, f"v_sub_f32 v{NEGM+4*rt+k}, v{NEGM+4*rt+k}, v{X}")
        regs = [PB + 12 * j + 4 * rt + k for j in range(14) for k in range(4)]
        if last: regs += [o + k for k in range(4)]
        else:
            for k in range(8): L(R, f"v_sub_f32 v{o+k}, v{o+k}, v{X}")
        for r in regs:
            L(R, f"v_lshlrev_b32 v{X+2}, 16, v{r}\nv_and_b32 v{X+3}, s{sTmp}, v{r}\nv_mul_f32 v{X+2}, v{X+2}, v{X+1}\n"
                 f"v_mul_f32 v{X+3}, v{X+3}, v{X+1}\nv_cvt_pk_bf16_f32 v{r}, v{X+2}, v{X+3}")
        for a in [aL + 4 * rt + k for k in range(4)]:
            L(R, f"v_accvgpr_read_b32 v{X+2}, a{a}\nv_mul_f32 v{X+2}, v{X+2}, v{X+1}\nv_accvgpr_write_b32 a{a}, v{X+2}")
    L(R, f"s_nop 1\ns_setpc_b64 s[{sRet}:{sRet+1}]")

def lmfma(j): return [Ins(f"{MF} {ar(aL+4*rt)}, {ar(aOnes)}, {vr(Preg(j, rt))}, {'0' if j == 0 else ar(aL+4*rt)}") for rt in range(3)]
def maxchain(p):
    s = SB[p]
    o = [s + 8 * rt + k for k in range(4) for rt in range(3)] + [s + 8 * rt + 4 + k for rt in range(3) for k in range(4)]
    r = [f"v_max3_f32 v{vMx}, v{o[0]}, v{o[1]}, v{o[2]}"]
    r += [f"v_max3_f32 v{vMx}, v{vMx}, v{o[k]}, v{o[k+1]}" for k in range(3, 23, 2)]
    return r + [f"v_max_f32 v{vMx}, v{vMx}, v{o[23]}", f"v_cmp_lt_f32 vcc, s{sT}, v{vMx}"]
def softmax_items(j, e, dl, soft, cvts, deps=()):
    p = j & 1
    for rt in range(3):
        s = Sreg(p, rt, 0)
        ex = [Item(Ins(f"v_exp_f32 v{s+k}, v{s+k}", cost=2), e, dl - 1, deps=deps) for k in range(8)]
        soft += ex
        cvts += [Item(Ins(f"v_cvt_pk_bf16_f32 v{Preg(j,rt)+k}, v{s+2*k}, v{s+2*k+1}"), e, dl, deps=ex[2*k:2*k+2]) for k in range(4)]

def block(P, R, j):
    p = j & 1
    FK = 16 * (j + 1)
    M = lmfma(j - 1) if j else []
    n0 = len(M)
    for ds in range(8):
        for T in range(2):
            for rt in range(3):
                acc = vr(Sreg(1 - p, rt, T))
                M.append(Ins(f"{MF} {acc}, {ar(FR(FK + 2*ds + T))}, {Qf(rt, ds)}, {vr(NEGM + 4*rt) if ds == 0 else acc}"))
    n = len(M)
    sync, reads, soft, cvts, dma, chk, misc = [], [], [], [], [], [], []
    deps = []
    if j:
        chk += [Item(Ins(x), 1 if k < 5 else 3, n0 + 8) for k, x in enumerate(maxchain(p))]
        br = Item([Ins(f"s_cbranch_vccnz L_rare_{j}"), Ins(f"L_ret_{j}:", cost=0)], n0 + 6, n0 + 9, deps=[chk[-1]])
        chk.append(br); deps = [br]
        L(R, f"L_rare_{j}:\ns_call_b64 s[{sRet}:{sRet+1}], L_resc_{p}\ns_branch L_ret_{j}")
    softmax_items(j, 0, n - 2, soft, cvts, deps)
    for fi in range(4, 16):
        first = n0 + 3 * fi
        reads.append(Item(kread(FK + fi, fi >> 1, fi & 1), max(first - 24, 0), first - (3 * fi) % 6 - 6))
    for i in range(8):
        g = n0 + 6 * i - 1
        sync.append(Item(W(lg=f"f{FK+2*i+1}"), g, g))
    if j < 14:
        reads.append(Item(Ins(kstep(j + 1)), n - 14, n - 11))
        for fi in range(4):
            reads.append(Item(kread(FK + 16 + fi, fi >> 1, fi & 1), n - 10, n - 5))
    b2 = OPT["bar2a"]
    if j and j % b2 == 0:
        need = [t for t in range(j + 2, min(j + 2 + b2, 16)) if t not in KREG or OPT["nostage"]]
        sync.append(Item([W(vm=[f"K{t}" for t in need] if need else None), Ins("s_barrier")], 0, 0))
    per = OPT["per2a"]
    i0, i1 = per * (j + 1), per * (j + 2)
    gl = (i1 - 1) // 4
    assert gl - 2 <= j - j % b2
    spaced(dma, paced(STREAM2A(), i0, i1), 8, n - 2, 40 // per)
    a, b, c = SPARE + 4, SPARE + 5, SPARE + 6
    if j == 0:
        dma += items(f"""
s_lshl_b32 s{sTmp2}, s3, 12
s_lshl_b32 s{sTmp}, s{sB}, 3
s_add_u32 s{sTmp2}, s{sTmp2}, s{sTmp}
v_lshlrev_b32 v{a}, 12, v0
v_add_u32 v{a}, s{sTmp2}, v{a}
v_mov_b32 v{b}, 1
buffer_atomic_add v{b}, v{a}, {srd(sDbg)}, 0 offen sc1""", 0, n - 1)
    if j == 2:
        misc += items(f"""
s_lshl_b32 s{sTmp}, s{sU}, 12
v_subrev_u32 v{a}, s{sTmp}, v{vA}
v_lshrrev_b32 v{b}, 5, v0
v_lshlrev_b32 v{b}, 10, v{b}
v_sub_u32 v{vA}, v{a}, v{b}
v_xor_b32 v{vA+1}, 32, v{vA}
v_xor_b32 v{vA+2}, 64, v{vA}
v_xor_b32 v{vA+3}, 0x60, v{vA}
s_lshl_b32 s{sTmp}, s{sU}, 6
v_xor_b32 v{vR[0]}, s{sTmp}, v{vA}
v_xor_b32 v{vR[1]}, s{sTmp}, v{vA+1}""", n0 + 10, n - 1)
    if j == 5:
        misc += items(f"""
s_lshl_b32 s{sTmp}, s{sB}, 3
v_lshlrev_b32 v{SPARE+10}, 12, v0
v_add_u32 v{SPARE+10}, s{sTmp}, v{SPARE+10}
buffer_load_dword v{SPARE+11}, v{SPARE+10}, {srd(sDbg)}, 0 offen sc1""", n0 + 10, n - 1)
        misc[-1].ins[0].tag = "cnt"
    if j == 13:
        txt = f"""
s_mul_i32 s{sSt}, s3, {21*8192}
s_lshl_b32 s{sTmp2}, s{sH}, 13
s_add_u32 s{sHo}, s{sSt}, s{sTmp2}
s_lshl_b32 s{sTmp2}, s{sH}, 10
s_add_u32 s{sSt}, s{sSt}, s{sTmp2}
"""
        for i in range(7):
            txt += f"s_add_u32 s{sTmp2}, s{sTmp2}, 1024\ns_and_b32 s{sTmp2}, s{sTmp2}, 0x1fff\ns_add_u32 s{sSrc+i}, s{sTmp2}, s{sHo}\n"
        misc += items(txt, n0 + 10, n - 1)
    P += schedule(M, sync, [tighten(reads), tighten(chk), tighten(soft), tighten(cvts), tighten(dma), tighten(misc)],
                  name=f"blk{j}", verbose=(j in (0, 1, 2, 8, 14)))

def publish(val):
    return [[Ins(f"v_mov_b32 v{vT}, {val}")], [Ins(f"buffer_store_dword v{vT}, v{vFs}, {srd(sFl)}, 0 offen sc1", cost=2)]]
def unit_loads(k, dst, voff):
    return [Ins(f"buffer_load_dwordx4 {dst(i)}, v{voff}, {srd(sWs)}, s{sSrc+i} offen sc1", cost=2, tag=f"u{k}s{i}") for i in range(7)]

def phase2b(P, R):
    P += lmfma(14)
    P += [W(vm="cnt"), Ins(f"v_readfirstlane_b32 s{sOk}, v{SPARE+11}"), Ins("s_nop 3")]
    L(P, "\n".join(maxchain(1)))
    L(P, f"s_cmp_lt_u32 s{sOk}, 8\ns_cbranch_scc1 L_clr_wait\nL_clr_ok:\ns_cbranch_vccnz L_rare_15\nL_ret_15:")
    L(R, f"L_rare_15:\ns_call_b64 s[{sRet}:{sRet+1}], L_resc_last\ns_branch L_ret_15")
    F0 = 16 * 16
    N = len(ITEMS)
    M = []; start = []; frag0 = []; order = []
    nf = 0
    def ofrag(c, i): return vr(OF3 + 4 * i) if c == 3 else ar(aOF + 4 * i)
    nV3 = ITEMS.index(("V", 3, 3))
    for n, (t, c, i) in enumerate(ITEMS):
        start.append(len(M)); frag0.append(nf)
        if t == "V":
            dtmajor = i == 3
            fl = [(dt, ks) for dt in range(4) for ks in range(4)] if dtmajor else [(dt, ks) for ks in range(4) for dt in range(4)]
            for f, (dt, ks) in enumerate(fl):
                for rt in range(3):
                    acc = ar(aT0 + 4 * rt) if (c == 0 and dt == 3) else vr(Otile(dt, rt))
                    M.append(Ins(f"{MF} {acc}, {ar(FR(F0 + nf + f))}, {vr(Preg(4*i + ks, rt))}, {'0' if (i == 0 and ks == 0) else acc}"))
            if n == 2: M += lmfma(15)
        else:
            fl = [(sg, tt) for sg in range(4) for tt in range(2)]
            for f, (sg, tt) in enumerate(fl):
                for rt in range(3):
                    acc = ar(aOut + 24 * i + 8 * rt + 4 * tt)
                    M.append(Ins(f"{MF} {acc}, {ar(FR(F0 + nf + f))}, {ofrag(c, 3 * sg + rt)}, {'0' if (c == 0 and sg == 0) else acc}"))
        order.append(fl); nf += len(fl)
    start.append(len(M))
    n_all = len(M)
    groups = []
    n = 0
    while n < N:
        run = [k for k in range(n + 1, N) if all(ITEMS[x][0] == "W" for x in range(n + 1, k + 1))]
        if ITEMS[n][0] == "V": g = [n] + (run[:2] if (OPT["big"] and n >= 4) else [])
        else: g = [n] + (run[:2] if len(run) == 2 else run[:1])
        groups.append(g); n += len(g)
    sync, reads, dma, nrm, epi, xch, soft, cvts, oxr = [], [], [], [], [], [], [], [], []
    blobs = {}
    half = {"V": 0, "W": 0}
    assert (16 * OPT["per2a"]) % 4 == 0
    todo_left = list(range(4 * OPT["per2a"] - 9, RB))
    for gi, grp in enumerate(groups):
        g0 = max(start[grp[0]] - 13, -1)
        prev = groups[gi - 1] if gi else None
        lastf = F0 + frag0[grp[0]] - 1
        sync.append(Item([W(vm=f"n{grp[-1]}", lg=f"w{lastf}" if gi else None), Ins("s_barrier")], g0, g0))
        for n in grp:
            t, c, i = ITEMS[n]
            hf = (n % RB) >> 2
            regs = [vA + k for k in range(4)] if t == "V" else vR
            e = max(start[n] - 13, -1)
            if half[t] != hf:
                for r in regs: reads.append(Item(Ins(f"v_xor_b32 v{r}, 0x10000, v{r}"), e - 6, e - 1))
                half[t] = hf
            for f, x in enumerate(order[n]):
                F = F0 + frag0[n] + f
                if t == "V": va, off = vA + x[0], x[1] * 4096
                else: va, off = vR[x[1]], x[0] * 4096
                off += (n % 4) * 16384
                first = start[n] + 3 * f
                nxt = start[n + 1] - 13 - 4
                d = min(first - 3 * (f & 1) - 7 + (2 if f >= 2 else 0), nxt)
                ee = max(e, first - 3 * NF2 + 3)
                if gi == 0: ee = -1 if f < 4 else 0; d = -1 if f < 4 else max(d, 2 * f - 6)
                reads.append(Item(Ins(f"ds_read_b64_tr_b16 {ar(FR(F),2)}, v{va} offset:{off}", tag=f"w{F}x"), ee, d))
                reads.append(Item(Ins(f"ds_read_b64_tr_b16 {ar(FR(F)+2,2)}, v{va} offset:{off+2048}", tag=f"w{F}"), ee, d))
                if f % 2 == 0: sync.append(Item(W(lg=f"w{F+1}"), first - 1, first - 1)) if not (first - 1 in [start[k] - 13 for k in range(N) if k in [x_[0] for x_ in groups]]) else None
        todo = todo_left + [k + RB for k in (prev or []) if k + RB < N]
        nmax = 2 if grp[0] < 8 else 9
        todo, todo_left = todo[:nmax], todo[nmax:]
        assert all(k > grp[-1] + 1 for k in todo + todo_left), (grp, todo, todo_left)
        span = start[grp[-1] + 1] - start[grp[0]]
        its = [x for k in todo for x in item_dma(k)]
        if its: spaced(dma, its, g0 + 2, g0 + span - 1, max(3, min(8, (span - 4) / (4 * len(todo)))), lo=max(g0 - 20, 0))
    softmax_items(15, 0, start[3] - 6, soft, cvts)
    nrm += items(f"""
s_mul_i32 s{sTmp}, s{sU+1}, 12288
s_add_u32 s{sTmp}, s{sTmp}, {X1}
v_add_u32 v{vXr_}, s{sTmp}, v{vL16}
s_mul_i32 s{sTmp}, s{sU}, 6144
v_add_u32 v{vXw}, s{sTmp}, v{vXr_}""", start[2] + 8, start[3])
    for rt in range(3):
        nrm += [Item(Ins(f"v_accvgpr_read_b32 v{vRl+rt}, a{aL+4*rt}"), start[3] + 6, start[3] + 24),
                Item(Ins(f"v_rcp_f32 v{vRl+rt}, v{vRl+rt}", cost=2), start[3] + 6, start[3] + 26)]
    def norm(c, kk, rt):
        A, B = Otile(2 * kk, rt), Otile(2 * kk + 1, rt)
        r = []
        if c == 0 and kk == 1: r += [f"v_accvgpr_read_b32 v{B+k}, a{aT0+4*rt+k}" for k in range(4)]
        r += [f"v_mul_f32 v{x+k}, v{x+k}, v{vRl+rt}" for x in (A, B) for k in range(4)]
        r += [f"v_cvt_pk_bf16_f32 v{A}, v{A}, v{A+1}", f"v_cvt_pk_bf16_f32 v{A+1}, v{A+2}, v{A+3}",
              f"v_cvt_pk_bf16_f32 v{A+2}, v{B}, v{B+1}", f"v_cvt_pk_bf16_f32 v{A+3}, v{B+2}, v{B+3}"]
        return r, f"ds_write_b128 v{vXw}, {vr(A)} offset:{(kk*3+rt)*1024}"
    for c in range(4):
        n = ITEMS.index(("V", c, 3))
        s0, end = start[n], start[n + 1] - 1
        oread = [Ins(f"ds_read_b128 {ofrag(c, i)}, v{vXr_} offset:{i*1024}", tag=f"ox{c}_{i//3}") for i in range(12)]
        if c == 0:
            wr = []
            for rt in range(3):
                r, w = norm(c, 0, rt)
                nrm += [Item(Ins(x), s0 + 24 + 6, end) for x in r]; wr.append(w)
            blob = []
            L(blob, "\n".join(wr) + "\ns_nop 4")
            for rt in range(3):
                r, w = norm(c, 1, rt)
                L(blob, "\n".join(r) + "\n" + w)
            stamp(blob, "m")
            blobs[end] = blob
            gx = end + 8
        else:
            gx = start[n + 3] - 1
            for kk in range(2):
                for rt in range(3):
                    r, w = norm(c, kk, rt)
                    e = s0 + 30 if kk == 0 else end + 7
                    d = gx - 6 - (5 - 3 * kk - rt) * 7
                    nrm += [Item(Ins(x), e, d - 1) for x in r] + [Item(Ins(w, tag=f"xw{c}"), e, d)]
        sync.append(Item([W(lg=f"xw{c}" if c else 0), Ins("s_barrier")], gx, gx))
        use = start[ITEMS.index(("W", c, 0))]
        for i, x in enumerate(oread): oxr.append(Item(x, gx, use + 6 * (i // 3) - 8))
        for sg in range(4): sync.append(Item(W(lg=f"ox{c}_{sg}"), use + 6 * sg - 2, use + 6 * sg - 2))
        if c == 3: xs = []; stamp(xs, "m"); blobs[end] = xs
    ef = start[nV3 + 1] + 1
    a, b, c_ = EP, EP + 1, EP + 2
    xch += items(f"""
v_lshlrev_b32 v{vFl}, 2, v0
s_lshl_b32 s{sTmp}, s{sH}, 2
v_lshlrev_b32 v{vFs}, 12, v0
v_add_u32 v{vFs}, s{sTmp}, v{vFs}
v_lshrrev_b32 v{a}, 4, v0
v_bfe_u32 v{b}, v0, 2, 2
v_cmp_eq_u32 vcc, v{a}, v{b}
v_and_b32 v{a}, 1, v0
v_lshlrev_b32 v{a}, 4, v{a}
v_mov_b32 v{b}, 0x3f80
v_lshlrev_b32 v{a}, v{a}, v{b}
v_cndmask_b32 v{a}, 0, v{a}, vcc
v_and_b32 v{b}, 2, v0
v_cmp_eq_u32 vcc, 0, v{b}
v_mov_b32 v{vSel+2}, 0
v_mov_b32 v{vSel+3}, 0
v_cndmask_b32 v{vSel}, 0, v{a}, vcc
v_sub_u32 v{vSel+1}, v{a}, v{vSel}
v_mov_b32 v{vSel+4}, 0
v_mov_b32 v{vSel+5}, 0
v_mov_b32 v{vSel+6}, v{vSel}
v_mov_b32 v{vSel+7}, v{vSel+1}""", ef, start[ITEMS.index(("W", 3, 0)) + 1] + 4)
    tail = []
    for pos in range(7):
        n = ITEMS.index(("W", 3, pos))
        e0 = start[n + 1] + 6
        nn = ITEMS.index(("W", 3, pos + 1)) + 1 if pos < 6 else None
        for rt in range(3):
            idx = 3 * pos + rt
            b = EP + 8 * (idx & 1)
            own = OWN + 4 * (idx >> 3)
            seq = [[Ins(f"v_accvgpr_read_b32 v{b+k}, a{aOut + 24*pos + 8*rt + k}")] for k in range(8)]
            seq += [[Ins(f"s_mov_b32 s{sTmp}, s{sSt}")], [Ins(f"s_add_u32 s{sSt}, s{sSt}, 8192")]]
            seq += [[Ins(f"v_cvt_pk_bf16_f32 v{b+k}, v{b+2*k}, v{b+2*k+1}")] for k in range(4)]
            seq += [[Ins(f"s_cmp_eq_u32 s{sH}, {idx & 7}"), Ins(f"s_cbranch_scc1 L_cap_{idx}"), Ins(f"L_capr_{idx}:", cost=0)]]
            L(R, f"L_cap_{idx}:\n" + "\n".join(f"v_mov_b32 v{own+k}, v{b+k}" for k in range(4)) + f"\ns_mov_b32 s{sTmp}, 0x10000000\ns_branch L_capr_{idx}")
            seq += [[Ins(f"buffer_store_dwordx4 {vr(b)}, v{vL16}, {srd(sWs)}, s{sTmp} offen sc1", cost=2, tag=f"st{pos}")]]
            if pos < 6:
                f0 = start[ITEMS.index(("W", 3, 0)) + 1] + 6
                for x in seq: epi.append(Item(x, e0, max(f0 + (idx + 1) * (n_all - f0) // 18, e0 + 8 * (rt + 1))))
            else: tail += seq
    if OPT["early"]:
        gA = start[ITEMS.index(("W", 3, 5))] + 2
        sync.append(Item(W(vm="st2"), gA, gA))
        pa = publish(1)
        xch += [Item(pa[0], gA - 4, gA), Item(pa[1], gA + 1, gA + 3)]
        xch.append(Item(Ins(f"buffer_load_dword v{vPoll}, v{vFl}, {srd(sFl)}, 0 offen sc1", cost=2, tag="fA"), n_all - 12, n_all - 8))
    P += schedule(M, sync, [tighten(reads), tighten(oxr), tighten(dma), tighten(soft), tighten(cvts), tighten(nrm), tighten(xch), tighten(epi)],
                  name="p2b", verbose=True, blobs=blobs)
    L(P, "s_nop 7")
    for x in tail: P += x
    stamp(P, "mt")
    if OPT["early"]:
        P.append(W(vm="fA"))
        L(P, f"v_cmp_le_u32 vcc, 1, v{vPoll}")
        P += unit_loads(0, lambda i: vr(88 + 4 * i), vL16)
        L(P, f"s_mov_b32 s{sOk}, vcc_lo")
    else: L(P, f"s_mov_b32 s{sOk}, 0")
    P.append(W(vm="st5"))
    for x in publish(2): P += x
    P.append(Ins(f"buffer_load_dword v{vPoll}, v{vFl}, {srd(sFl)}, 0 offen sc1", tag="fB"))
    P.append(W(vm="st6"))
    for x in publish(3): P += x
    stamp(P, "t")

def poll(P, name, thr):
    L(P, f"""
L_{name}:
v_cmp_le_u32 vcc, {thr}, v{vPoll}
s_nop 1
s_cmp_eq_u32 vcc_lo, 0xff
s_cbranch_scc1 L_{name}_ok
""")
    n0 = len(P)
    L(P, f"""
s_sleep {OPT["sleep"]}
buffer_load_dword v{vPoll}, v{vFl}, {srd(sFl)}, 0 offen sc1
s_waitcnt vmcnt(0)
s_branch L_{name}
""")
    for i in P[n0:]: i.kind = "raw"
    L(P, f"L_{name}_ok:")

def reduce_unit(P, k, src, vout):
    A = SB[0] + 8 * k
    own = vr(OWN + 4 * k)
    L(P, f"{MF} {vr(A)}, {vr(vSel)}, {own}, 0\n{MF} {vr(A+4)}, {vr(vSel+4)}, {own}, 0")
    L(P, f"""
s_add_u32 s{sTmp}, s{sH}, {8*k}
s_mul_i32 s{sTmp2}, s{sTmp}, 11
s_lshr_b32 s{sTmp2}, s{sTmp2}, 5
s_mul_i32 s{sCg}, s{sTmp2}, 3
s_sub_u32 s{sTmp}, s{sTmp}, s{sCg}
s_mul_i32 s{sTmp}, s{sTmp}, {16*896}
s_add_u32 s{sTmp2}, s{sTmp2}, s{sRot}
s_sub_u32 s{sCg}, s{sTmp2}, 7
s_cselect_b32 s{sTmp2}, s{sTmp2}, s{sCg}
s_lshl_b32 s{sTmp2}, s{sTmp2}, 7
s_add_u32 s{sTmp}, s{sTmp}, s{sTmp2}
""")
    for i in range(7):
        P.append(W(vm=f"u{k}s{i}"))
        L(P, f"{MF} {vr(A)}, {vr(vSel)}, {src(i)}, {vr(A)}\n{MF} {vr(A+4)}, {vr(vSel+4)}, {src(i)}, {vr(A+4)}")
    L(P, "s_nop 6")
    for r in range(4): L(P, f"v_cvt_pk_bf16_f32 v{A+r}, v{A+2*r}, v{A+2*r+1}")
    L(P, f"s_nop 1\nv_permlane16_swap_b32 v{A}, v{A+2}\nv_permlane16_swap_b32 v{A+1}, v{A+3}")
    L(P, f"buffer_store_dwordx4 {vr(A)}, v{vout}, {srd(sOut)}, s{sTmp} offen {OPT['out_flag']}")

def final(P):
    vo, v1, v2 = 10, 11, 12
    U = [88, 116, 144]
    L(P, f"""
v_add_u32 v{v1}, 0x10000, v{vL16}
v_add_u32 v{v2}, 0x20000, v{vL16}
v_and_b32 v{vo}, 15, v0
v_mul_u32_u24 v{vo}, 896, v{vo}
v_bfe_u32 v13, v0, 4, 1
v_lshl_add_u32 v{vo}, v13, 5, v{vo}
v_lshrrev_b32 v13, 5, v0
v_lshl_add_u32 v{vo}, v13, 4, v{vo}
s_mul_i32 s{sTmp}, s{sU+1}, {48*896}
s_lshl_b32 s{sTmp2}, s{sU}, 6
s_add_u32 s{sTmp}, s{sTmp}, s{sTmp2}
v_add_u32 v{vo}, s{sTmp}, v{vo}
""")
    P.append(W(vm="fB"))
    poll(P, "pB", 2)
    stamp(P, "mt")
    src = lambda k: (lambda i: vr(U[k] + 4 * i))
    L(P, f"s_cmp_eq_u32 s{sOk}, 0xff\ns_cbranch_scc1 L_have0\ns_waitcnt vmcnt(0)")
    P += unit_loads(0, src(0), vL16)
    L(P, "L_have0:")
    P += unit_loads(1, src(1), v1)
    L(P, f"s_cmp_gt_u32 s{sH}, 4\ns_cbranch_scc1 L_two\ns_cmp_ge_u32 s{sH}, 2\ns_cselect_b32 s{sOk}, 3, 2")
    poll(P, "pC", f"s{sOk}")
    stamp(P, "t")
    ns = G.nstamp
    P += unit_loads(2, src(2), v2)
    for k in range(3): reduce_unit(P, k, src(k), vo)
    L(P, "s_branch L_fin\nL_two:")
    if "t" in OPT["stamps"]: G.nstamp = ns - 1; stamp(P, "t")
    for k in range(2):
        Q = []
        reduce_unit(Q, k, src(k), vo)
        w = [i for i in Q if i.txt == "WAIT"]
        for i, x in enumerate(w): x.vm = (13 - i) if k == 0 else (7 - i)
        P += Q
    L(P, "L_fin:")
    if OPT["amp"] >= 0:
        stamp(P, OPT["stamps"][0])
        j = OPT["amp"] or G.nstamp - 1
        L(P, f"""
s_sub_u32 s{sTmp}, s{STAMPS[j]}, s{STAMPS[0]}
s_mul_i32 s{sTmp}, s{sTmp}, {OPT["ampk"]}
L_amp:
s_memrealtime s[92:93]
s_waitcnt lgkmcnt(0)
s_sub_u32 s92, s92, s{STAMPS[G.nstamp-1]}
s_cmp_lt_u32 s92, s{sTmp}
s_cbranch_scc1 L_amp
""")
        return
    if OPT["stamps"]:
        stamp(P, OPT["stamps"][0])
        ns = G.nstamp
        L(P, f"""
s_waitcnt vmcnt(0)
s_cmp_lg_u32 s3, 0
s_cbranch_scc1 L_end
s_mov_b32 s{sWs}, s18
s_and_b32 s{sWs+1}, s19, 0xffff
s_mov_b32 s{sWs+2}, 0x10000000
s_mul_i32 s{sTmp}, s2, {ns*16}
s_add_u32 s{sTmp}, s{sTmp}, 0x8000000
v_mov_b32 v10, s{sTmp}
s_mov_b64 exec, 1
v_mov_b32 v17, 0
v_mov_b32 v19, 0
""")
        for j in range(ns):
            L(P, f"v_mov_b32 v16, s{STAMPS[j]}\nv_mov_b32 v18, s{STAMPS[j]+1}\n"
                 f"buffer_store_dwordx4 v[16:19], v10, {srd(sWs)}, 0 offen offset:{16*j}\ns_nop 1")

def clr_wait(R):
    L(R, f"""
L_clr_wait:
s_sleep 4
buffer_load_dword v{SPARE+11}, v{SPARE+10}, {srd(sDbg)}, 0 offen sc1
s_waitcnt vmcnt(0)
v_readfirstlane_b32 s{sOk}, v{SPARE+11}
s_nop 1
s_cmp_lt_u32 s{sOk}, 8
s_cbranch_scc1 L_clr_wait
s_branch L_clr_ok
""")

def main():
    P = []; R = []
    prologue(P)
    phase1_and_qk0(P)
    stamp(P, "m")
    init_path(P)
    for j in range(15): block(P, R, j)
    stamp(P, "m")
    phase2b(P, R)
    final(P)
    resolve_waits(P)
    errs = check(P, "main")
    for nm, p, last in (("0", 0, False), ("1", 1, False), ("last", 1, True)):
        Q = []; rescale(Q, nm, p, last); errs += check(Q, "resc"); R += Q
    clr_wait(R)
    for e in errs[:30]: print("HAZARD", e, file=sys.stderr)
    txt = f"""; fused GQA block: Q projection, attention, output projection, cross-workgroup reduce
; @launch grid=(256,1,1) block=(256,1,1) lds=163840
.amdgcn_target "amdgcn-amd-amdhsa--gfx950"
.text
.globl {KN}
.p2align 8
.type {KN},@function
{KN}:
"""
    txt += "\n".join(i.txt for i in P)
    txt += "\nL_end:\ns_endpgm\n"
    txt += "\n".join(i.txt for i in R)
    txt += f"""
s_endpgm
.section .rodata,"a"
.p2align 6
.amdhsa_kernel {KN}
  .amdhsa_next_free_vgpr 512
  .amdhsa_next_free_sgpr 102
  .amdhsa_accum_offset 256
  .amdhsa_group_segment_fixed_size 0
  .amdhsa_kernarg_size 64
  .amdhsa_user_sgpr_count 2
  .amdhsa_user_sgpr_kernarg_segment_ptr 1
  .amdhsa_system_sgpr_workgroup_id_x 1
  .amdhsa_float_denorm_mode_32 3
.end_amdhsa_kernel
"""
    open(sys.argv[1], "w").write(txt)
    print("instructions:", len(P), "stamps:", G.nstamp, "hazards:", len(errs), file=sys.stderr)

main()
```

```python
import sys, math, struct
from asmlib import *

KN = "standalone__gqa_block_cached__near_ridge_kernel"
OPT = dict(stamps="", nt_kv=True, nt_x=False, nt_w=False, pretouch=True, map2=True, xlead=4, zero="",
           codepf=True, out_flag="", kvs=6, xfirst=2, tlb=True, wqsp=3, ptat=7, npair=6,
           sleep=1, nd=0, kend=15, per2a=3, nostage=True, big=True, bar2a=2, early=True, amp=-1, ampk=1, fgrp=2, stf='sc1', ldf='sc1', nost=False, kvf='nt', wqx=0, kx=0, rotd=0)
for a in sys.argv[2:]:
    k, v = a.split("=")
    assert k in OPT, k
    OPT[k] = type(OPT[k])(int(v)) if not isinstance(OPT[k], str) else v

def f2u(f): return struct.unpack("<I", struct.pack("<f", f))[0]
CSCALE = math.log2(math.e) / 16.0
THRESH = 8.0
KS = 16896
def KP(j): return ((j % 9) + 2) % 9 * KS
WA = [0, 16384, 101376, 117760, 134144]
NR = 5
def wslot(s): return (s + 4) % NR
XU = [33792 + 12288 * u for u in range(5)] + [150528, 33792]
X1 = 131072
FLAG0 = 32 << 20
NP = OPT["npair"]
STG = [("p", k) for k in range(NP)] + [(0, st) for st in range(NP // 2, 7)] + [(1, st) for st in range(NP // 2, 7)] + \
      [(2, st) for st in range(7)] + [(3, st) for st in range(7)]
assert len(STG) == 28 and NP % 2 == 0
def unit_of(s, hi):
    t, k = STG[s]
    return (hi, k) if t == "p" else (t, 2 * k + hi)
XNEED = {}; DONE = {}
for _s in range(27, -1, -1):
    for _h in range(2): XNEED[unit_of(_s, _h)[1]] = _s
for _s in range(28):
    for _h in range(2): DONE[unit_of(_s, _h)[0]] = 24 * (_s + 1)
ITEMS = [("V", 0, _q) for _q in range(4)]
for _c in (1, 2):
    _w = [("W", _c - 1, _p) for _p in range(7)]
    ITEMS += [("V", _c, 0)] + _w[0:2] + [("V", _c, 1)] + _w[2:4] + [("V", _c, 2)] + _w[4:5] + [("V", _c, 3)] + _w[5:7]
ND = OPT["nd"]
_w = [("W", 2, _p) for _p in range(7)]
_cut = [0, (ND + 2) // 3, (2 * ND + 2) // 3, ND]
for _q in range(4): ITEMS += [("V", 3, _q)] + (_w[_cut[_q]:_cut[_q + 1]] if _q < 3 else _w[ND:ND + 3])
for _p in range(7): ITEMS += ([_w[_p]] if _p >= ND + 3 else []) + [("W", 3, _p)]
assert len(ITEMS) == 44 and len(set(ITEMS)) == 44
RB = 8
NT_KV = " " + OPT["kvf"].replace("_", " ").replace("none", "")
NT_X = " nt" if OPT["nt_x"] else ""
NT_W = " nt" if OPT["nt_w"] else ""

sFl, sPT = 4, 12
sX, sK, sV, sWq, sWo, sWs, sDbg, sOut = 20, 24, 28, 32, 36, 40, 44, 48
sB, sH, sRot, sC, sT, sKVm, sWqm, sWom = 52, 53, 54, 55, 56, 57, 58, 59
sWqOff = 60
sTmp, sVw, sOk = 67, 68, 69
sTo = 70
sOwn = 74
sCg, sTmp2, sSt, sWoW = 76, 77, 78, 79
sU = 80
sHo, sHm = 82, 83
sXOff, sXm = 84, 91
sSrc = 84
sRd = 1
sRet = 94
STAMPS = [96, 98, 100, 8, 16, 12, 22, 20]
def srd(d): return f"s[{d}:{d+3}]"
vK, vMx, vDv, vDw = 1, 2, 3, 4
vXw, vXr_ = 1, 2
vD = 5
vRl = 5
vT = 8
vR = [9, 15]
vA = 10
vL16 = 14
SB = [16, 40]
NEGM = 64
SPARE = 76
PB = 88
ACC1 = [16, 64, 112, 64]
FR1 = 160
NF1 = 12
KREG = {4: 'v208', 5: 'a72', 6: 'v228'}
vKw = 245
vW = 224
vXo = 228
vXr = 232
vPT = 234
vT1 = 244
DUMMY = 236
vA2 = 246
vXr2 = 252
vFc = 112
OF3 = 136
vSel = 216
OWN = 184
EP = 196
vFl, vFs, vPoll = 212, 213, 224
aQ = 0
aX = 88
aOut = 0
aT0 = 96
aFR = 168
aL, aOnes = 232, 244
aOF = 208
NF2 = 10
def vr(b, n=4): return f"v[{b}:{b+n-1}]"
def ar(b, n=4): return f"a[{b}:{b+n-1}]"
def Qf(rt, ds): return ar(aQ + 4 * (ds * 3 + rt))
def Xf(slot, rt): return ar(aX + 4 * (slot * 3 + rt))
def Sreg(buf, rt, T): return SB[buf] + rt * 8 + T * 4
def Preg(j, rt): return PB + 12 * j + 4 * rt if j < 14 else Sreg(j & 1, rt, 0)
def Otile(dt, rt): return [NEGM + 4 * rt, SPARE + 4 * rt, Sreg(0, rt, 1), Sreg(1, rt, 1)][dt]
def FR(fi): return aFR + 4 * (fi % 16 if fi < 256 else (fi - 256) % NF2)
MF = "v_mfma_f32_16x16x32_bf16"

class G: nstamp = 0; errs = []
def stamp(P, kind):
    if not any(c in OPT["stamps"] for c in kind): return
    j = G.nstamp; G.nstamp += 1
    P += [Ins("s_memrealtime s[92:93]"), Ins("s_waitcnt lgkmcnt(0)"), Ins(f"s_mov_b32 s{STAMPS[j]}, s92"),
          Ins("s_memtime s[92:93]"), Ins("s_waitcnt lgkmcnt(0)"), Ins(f"s_mov_b32 s{STAMPS[j]+1}, s92")]

def L(P, s):
    for line in s.strip().split("\n"):
        line = line.strip()
        if line: P.append(Ins(line))
def items(txt, e, d):
    return [Item(Ins(x.strip(), cost=2 if x.strip().startswith(("buffer", "v_rcp", "v_exp")) else 1), e, d) for x in txt.strip().split("\n") if x.strip()]

def spaced(lst, its, e0, dmax, sp, lo=0):
    k = 0
    for x in its:
        e = min(e0 + int(sp * k), dmax)
        if x[0].kind == "vmem":
            lst.append(Item(x, e, min(e + 1, dmax))); k += 1
        else:
            lst.append(Item(x, lo, max(e - 1, -1)))

def inline(P, grp):
    for x in grp:
        P += x
        if " m0," in x[-1].txt: P.append(Ins("s_nop 0"))

def wq_dma(s):
    r = []
    t, k = STG[s]
    if t == "p":
        so = sWqOff + (k >> 1)
        if k & 1:
            r.append([Ins(f"s_add_u32 s{sTmp2}, s{so}, 262144")]); so = sTmp2
    else:
        so = sWqOff + k
        if STG[s - 1][0] != t:
            r.append([Ins(f"s_lshl_b32 s{sTmp}, s{sU+1}, 18")])
            r.append([Ins(f"s_xor_b32 s{sTmp2}, s{sRd}, {128*t}")])
            r.append([Ins(f"s_add_u32 s{sTmp}, s{sTmp}, s{sTmp2}")])
            r.append([Ins(f"s_add_u32 s{sWq}, s10, s{sTmp}"), Ins(f"s_addc_u32 s{sWq+1}, s11, 0")])
    r.append([Ins(f"s_add_u32 m0, s{sWqm}, {WA[wslot(s)]}")])
    for ch in range(4):
        r.append([Ins(f"buffer_load_dwordx4 v{vW+ch}, {srd(sWq)}, s{so} offen offset:{ch*1024}{NT_W} lds", cost=2, tag=f"wq{s}")])
    return r

def x_dma(u):
    r = [[Ins(f"s_add_u32 m0, s{sXm}, {XU[u]}")]]
    for i in range(3):
        r.append([Ins(f"buffer_load_dwordx4 v{vXo+i}, {srd(sX)}, s{sXOff+u} offen offset:{i*1024}{NT_X} lds", cost=2, tag=f"x{u}")])
    return r

def k_dma(j, ks=range(4)):
    r = [[Ins(f"s_add_u32 s{sHm}, s{sHo}, {j*16384}")], [Ins(f"s_add_u32 m0, s{sKVm}, {KP(j)}")]]
    for k in ks:
        r.append([Ins(f"buffer_load_dwordx4 v{vD+k}, {srd(sK)}, s{sHm} offen offset:{k*1056}{NT_KV} lds", cost=2, tag=f"K{j}")])
    return r

def kreg(j, k):
    f, b = KREG[j][0], int(KREG[j][1:]) + 4 * k
    return f"{f}[{b}:{b+3}]"
def k_load(j, k):
    return [[Ins(f"s_add_u32 s{sHm}, s{sHo}, {j*16384 + 96}")],
            [Ins(f"buffer_load_dwordx4 {kreg(j, k)}, v{vD+3}, {srd(sK)}, s{sHm} offen offset:{k*1024}{NT_KV}", cost=2, tag=f"K{j}")]]
def paced(groups, i0, i1):
    r = []
    for gi in range(i0 // 4, (i1 + 3) // 4):
        if gi >= len(groups): break
        grp = groups[gi]; ns = len(grp) - 4
        ks = [k for k in range(4) if i0 <= 4 * gi + k < i1]
        if ks: r += (grp[:ns] if (ks[0] == 0 or grp[0][0].txt.split()[1].startswith(f"s{sHm}")) else grp[ns-1:ns]) + [grp[ns + k] for k in ks]
    return r

def item_dma(n):
    t, c, i = ITEMS[n]
    r = []
    if t == "V":
        for ch in range(4): r.append([Ins(f"s_add_u32 s{sTo+ch}, s{sVw}, {i*65536 + c*128 + (0, -512, 6144, 5632)[ch] + 512}")])
        r.append([Ins(f"s_add_u32 m0, s{sWqm}, {(n % RB) * 16384}")])
        for ch in range(4):
            r.append([Ins(f"buffer_load_dwordx4 v{vDv}, {srd(sV)}, s{sTo+ch} offen offset:{ch*1024}{NT_KV} lds", cost=2, tag=f"n{n}")])
    else:
        for ch in range(4): r.append([Ins(f"s_add_u32 s{sTo+ch}, s{sWqOff+i}, {c*64*896 + ch*6144}")])
        r.append([Ins(f"s_add_u32 m0, s{sWom}, {(n % RB) * 16384}")])
        for ch in range(4):
            r.append([Ins(f"buffer_load_dwordx4 v{vDw}, {srd(sWo)}, s{sTo+ch} offen offset:{ch*1024}{NT_W} lds", cost=2, tag=f"n{n}")])
    return r

def STREAM2A(): return [k_dma(j) for j in range(7, 16)] + [item_dma(n) for n in range(RB)]

def mksrd(d, base, add, size, neg=None):
    if {sK: "k", sV: "k", sWq: "q", sX: "x", sWo: "o"}.get(d, "-") in OPT["zero"]: size = 0
    t = f"s_add_u32 s{d}, s{base}, {add}\ns_addc_u32 s{d+1}, s{base+1}, {neg or 0}\ns_and_b32 s{d+1}, s{d+1}, 0xffff\n"
    return t + f"s_mov_b32 s{d+2}, {size}\ns_mov_b32 s{d+3}, 0x20000\n"

def prologue(P):
    if OPT["stamps"]: L(P, "s_memrealtime s[92:93]\ns_memtime s[94:95]")
    L(P, "s_cmp_ge_u32 s2, 256\ns_cbranch_scc1 L_end\ns_load_dwordx16 s[4:19], s[0:1], 0")
    if OPT["codepf"]:
        L(P, """s_getpc_b64 s[20:21]
L_pc:
s_lshr_b32 s22, s2, 3
v_lshl_add_u32 v250, v0, 5, s22
v_lshlrev_b32 v250, 7, v250
v_min_u32 v250, (L_end-L_pc), v250
global_load_dword v251, v250, s[20:21]""")
    L(P, f"v_lshrrev_b32 v{vT1}, 6, v0\nv_and_b32 v0, 63, v0")
    if OPT["map2"]:
        L(P, f"""s_lshr_b32 s{sB}, s2, 4
v_readfirstlane_b32 s3, v{vT1}
s_lshl_b32 s{sTmp}, s2, 2
s_and_b32 s{sTmp}, s{sTmp}, 16
s_add_u32 s{sB}, s{sB}, s{sTmp}
s_and_b32 s{sH}, s2, 3
s_lshl_b32 s{sH}, s{sH}, 1
s_bfe_u32 s{sTmp}, s2, 0x10003
s_add_u32 s{sH}, s{sH}, s{sTmp}""")
    else:
        L(P, f"s_lshr_b32 s{sB}, s2, 3\nv_readfirstlane_b32 s3, v{vT1}\ns_and_b32 s{sH}, s2, 7")
    a, b, c = DUMMY, DUMMY + 1, DUMMY + 2
    L(P, f"""
s_mul_i32 s{sTmp}, s{sB}, 37
s_lshr_b32 s{sTmp}, s{sTmp}, 8
s_mul_i32 s{sTmp}, s{sTmp}, 7
s_sub_u32 s{sRot}, s{sB}, s{sTmp}
v_lshlrev_b32 v{vL16}, 4, v0
v_lshrrev_b32 v{a}, 1, v0
v_lshrrev_b32 v{b}, 4, v0
v_xor_b32 v{a}, v{a}, v{b}
v_and_b32 v{a}, 3, v{a}
v_lshrrev_b32 v{b}, 1, v{a}
v_lshlrev_b32 v{b}, 2, v{b}
v_and_b32 v{c}, 1, v{a}
v_or_b32 v{b}, v{b}, v{c}
v_and_b32 v{c}, 1, v0
v_lshl_or_b32 v{b}, v{c}, 1, v{b}
v_lshlrev_b32 v{b}, 4, v{b}
v_lshl_or_b32 v{vDw}, v{a}, 1, v{c}
v_bfe_u32 v{c}, v0, 3, 2
v_lshl_add_u32 v{b}, v{c}, 13, v{b}
v_lshrrev_b32 v{c}, 5, v0
v_lshl_add_u32 v{vW}, v{c}, 16, v{b}
v_add_u32 v{vW+1}, {4*8192-1024}, v{vW}
v_add_u32 v{vW+2}, {16*8192-2048}, v{vW}
v_add_u32 v{vW+3}, {20*8192-3072}, v{vW}
s_and_b32 s{sU}, s3, 1
s_lshr_b32 s{sU+1}, s3, 1
s_lshl_b32 s{sHo}, s{sU}, 9
s_lshl_b32 s{sWqm}, s3, 12
s_mul_i32 s{sXm}, s3, 3072
s_mul_i32 s{sTmp}, s3, 24
v_lshrrev_b32 v{a}, 3, v0
v_add_u32 v{a}, s{sTmp}, v{a}
v_and_b32 v{c}, 7, v0
""")
    for i in range(3):
        L(P, f"""
v_bfe_u32 v{b}, v{a}, 1, 3
v_xor_b32 v{b}, v{b}, v{c}
v_lshlrev_b32 v{b}, 4, v{b}
v_mul_u32_u24 v{vXo+i}, 896, v{a}
v_add_u32 v{vXo+i}, v{vXo+i}, v{b}
""")
        if i: L(P, f"v_subrev_u32 v{vXo+i}, {1024*i}, v{vXo+i}")
        if i < 2: L(P, f"v_add_u32 v{a}, 8, v{a}")
    L(P, f"s_mov_b32 s{sCg}, s{sRot}")
    def koff(st):
        L(P, f"""
s_lshl_b32 s{sWqOff+st}, s{sCg}, 19
s_add_u32 s{sWqOff+st}, s{sWqOff+st}, s{sHo}
s_lshl_b32 s{sXOff+st}, s{sCg}, 7
s_add_u32 s{sCg}, s{sCg}, 1
s_cmp_eq_u32 s{sCg}, 7
s_cselect_b32 s{sCg}, 0, s{sCg}
""")
    koff(0); koff(1)
    L(P, f"""
s_xor_b32 s{sTmp}, s{sH}, {OPT["wqx"]}
s_lshl_b32 s{sTmp}, s{sTmp}, 10
s_lshl_b32 s{sTmp2}, s{sU+1}, 7
s_mul_i32 s{sSt}, s{sB}, 86016
s_waitcnt lgkmcnt(0)
s_and_b32 s{sRd}, s{sB}, {OPT["rotd"]}
s_lshl_b32 s{sRd}, s{sRd}, 7
s_xor_b32 s{sTmp2}, s{sTmp2}, s{sRd}
""")
    if OPT["stamps"]:
        L(P, f"s_mov_b32 s{STAMPS[0]}, s92\ns_mov_b32 s{STAMPS[0]+1}, s94"); G.nstamp = 1
    stamp(P, "a")
    L(P, f"s_add_u32 s10, s10, s{sTmp}\ns_addc_u32 s11, s11, 0\ns_and_b32 s11, s11, 0xffff")
    L(P, mksrd(sWq, 10, f"s{sTmp2}", 447 * 8192 + 640))
    inline(P, wq_dma(0))
    L(P, mksrd(sX, 4, f"s{sSt}", 86016))
    inline(P, x_dma(0))
    a, b, c = 208, 209, 210
    L(P, f"""
v_bfe_u32 v{a}, v0, 2, 3
v_and_b32 v{c}, 3, v0
v_lshlrev_b32 v{b}, 7, v{a}
v_lshl_add_u32 v{b}, v{c}, 3, v{b}
v_lshrrev_b32 v{c}, 5, v0
v_lshl_add_u32 v{b}, v{c}, 11, v{b}
s_lshl_b32 s{sTmp}, s{sU}, 12
v_add_u32 v{b}, s{sTmp}, v{b}
v_lshrrev_b32 v{a}, 1, v{a}
""")
    for t in range(4):
        L(P, f"v_xor_b32 v{c}, {t}, v{a}\nv_lshl_add_u32 v{vA+t}, v{c}, 5, v{b}\nv_add_u32 v{vA2+t}, {WA[2]}, v{vA+t}")
    L(P, f"""
v_and_b32 v{a}, 15, v0
v_lshlrev_b32 v{b}, 7, v{a}
s_mul_i32 s{sTmp}, s{sU+1}, 6144
s_add_u32 s{sTmp}, s{sTmp}, {XU[0]}
v_add_u32 v{b}, s{sTmp}, v{b}
v_lshrrev_b32 v{a}, 1, v{a}
v_lshrrev_b32 v{c}, 4, v0
v_xor_b32 v{a}, v{a}, v{c}
v_lshl_add_u32 v{vXr}, v{a}, 4, v{b}
v_xor_b32 v{a}, 4, v{a}
v_lshl_add_u32 v{vXr+1}, v{a}, 4, v{b}
v_add_u32 v{vXr2}, {XU[5]-XU[0]}, v{vXr}
v_add_u32 v{vXr2+1}, {XU[5]-XU[0]}, v{vXr+1}
""")
    inline(P, wq_dma(1))
    for st in range(2, 7): koff(st)
    L(P, f"""
s_lshl_b32 s{sTmp}, s{sB}, 3
s_add_u32 s{sTmp}, s{sTmp}, s{sH}
s_xor_b32 s{sTmp}, s{sTmp}, {OPT["kx"]}
s_lshl_b32 s{sCg}, s{sTmp}, 18
s_sub_u32 s{sTmp}, s{sCg}, 96
s_cselect_b32 s{sTmp2}, -1, 0
""")
    L(P, mksrd(sK, 6, f"s{sTmp}", 262144 + 96, f"s{sTmp2}"))
    L(P, f"s_sub_u32 s{sTmp}, s{sCg}, 512\n" + mksrd(sV, 8, f"s{sTmp}", 262144 + 512, f"s{sTmp2}"))
    inline(P, x_dma(1) + wq_dma(2))
    L(P, f"s_mul_i32 s{sTmp}, s{sH}, 458752\n" + mksrd(sWo, 12, f"s{sTmp}", 458752))
    L(P, f"s_mul_i32 s{sTmp}, s{sB}, 688128\n" + mksrd(sWs, 18, f"s{sTmp}", 0 if OPT["nost"] else 688128))
    L(P, mksrd(sOut, 14, f"s{sSt}", 86016) + mksrd(sDbg, 16, 0, 256))
    L(P, f"""
s_mov_b32 s{sC}, {hex(f2u(CSCALE))}
s_mov_b32 s{sT}, {hex(f2u(THRESH))}
s_mul_i32 s{sKVm}, s3, 4224
s_lshl_b32 s{sHo}, s3, 12
s_lshl_b32 s{sVw}, s3, 14
s_lshl_b32 s{sWom}, s{sU}, 13
s_lshl_b32 s{sTmp}, s{sU+1}, 12
s_add_u32 s{sWom}, s{sWom}, s{sTmp}
s_mul_i32 s{sWoW}, s{sU}, {256*896}
s_mul_i32 s{sTmp}, s{sU+1}, {32*896}
s_add_u32 s{sWoW}, s{sWoW}, s{sTmp}
v_xor_b32 v{vD+3}, s{sRd}, v{vL16}
v_add_u32 v{vD}, 96, v{vD+3}
v_add_u32 v{vD+1}, 64, v{vD+3}
v_add_u32 v{vD+2}, 32, v{vD+3}
v_and_b32 v{a}, 7, v0
v_mul_u32_u24 v{a}, 1056, v{a}
v_bfe_u32 v{b}, v0, 3, 1
v_lshl_add_u32 v{a}, v{b}, 9, v{a}
v_lshrrev_b32 v{b}, 4, v0
v_lshl_add_u32 v{a}, v{b}, 4, v{a}
v_add_u32 v{vK}, {KP(0)}, v{a}
s_add_u32 s{sTmp}, s{sKVm}, {KP(4)}
v_add_u32 v{vKw}, s{sTmp}, v{vL16}
v_lshlrev_b32 v{b}, 4, v{vDw}
v_lshrrev_b32 v{a}, 3, v0
v_lshl_add_u32 v{vDv}, v{a}, 10, v{b}
v_mul_u32_u24 v{a}, 896, v{a}
v_add_u32 v{vDw}, v{a}, v{b}
""")
    inline(P, wq_dma(3))
    for u in range(2, OPT["xfirst"]): inline(P, x_dma(u))
    if OPT["pretouch"]:
        n = 16 if OPT["map2"] else 32
        rows = 448 // n
        L(P, f"""
s_and_b32 s{sTmp}, s{sB}, {n-1}
s_mul_i32 s{sTmp}, s{sTmp}, {rows}
s_lshl_b32 s{sTmp2}, s3, 3
s_add_u32 s{sTmp2}, s{sTmp2}, s{sTmp}
s_add_u32 s{sTmp}, s{sTmp}, {rows-1}
v_lshrrev_b32 v{a}, 3, v0
v_add_u32 v{a}, s{sTmp2}, v{a}
v_min_u32 v{a}, s{sTmp}, v{a}
v_lshlrev_b32 v{a}, 13, v{a}
v_and_b32 v{b}, 7, v0
{"" if OPT["rotd"] & 2 else f"v_or_b32 v{b}, 2, v{b}"}
v_lshl_add_u32 v{vPT}, v{b}, 7, v{a}
""")
        L(P, mksrd(sPT, 10, 0, 447 * 8192 + 1024))
    L(P, f"""
s_lshl_b32 s{sTmp}, s{sB}, 2
s_add_u32 s{sTmp}, s{sTmp}, s3
s_lshl_b32 s{sTmp}, s{sTmp}, 7
s_add_u32 s{sTmp}, s{sTmp}, {FLAG0}
""" + mksrd(sFl, 18, f"s{sTmp}", 32) + f"""
s_lshl_b32 s{sTmp}, s{sH}, 2
v_lshlrev_b32 v{a}, 12, v0
v_add_u32 v{vFc}, s{sTmp}, v{a}
v_mov_b32 v{vFc+1}, 0
""")
    P.append(Ins(f"buffer_store_dword v{vFc+1}, v{vFc}, {srd(sFl)}, 0 offen sc1", tag="clr"))
    if OPT["tlb"]:
        L(P, f"v_mov_b32 v{a}, 512")
        for i, d in enumerate((sK, sV, sWo, sWs, sOut)):
            P.append(Ins(f"buffer_load_dword v{DUMMY+i}, v{a}, {srd(d)}, 0 offen"))

def q_epilogue(dg, win, sA, sB_, sC_):
    base = ACC1[dg]
    u = 0
    for e in range(2):
        for rt in range(3):
            e0, d0 = win(u); u += 1
            A = base + ((2 * e) * 3 + rt) * 4; B = base + ((2 * e + 1) * 3 + rt) * 4
            for k in range(4): sA.append(Item(Ins(f"v_mul_f32 v{A+k}, s{sC}, v{A+k}"), e0, d0 - 4))
            for k in range(4): sA.append(Item(Ins(f"v_mul_f32 v{B+k}, s{sC}, v{B+k}"), e0, d0 - 4))
            cv = [Item(Ins(x), e0, d0 - 3) for x in (
                  f"v_cvt_pk_bf16_f32 v{A}, v{A}, v{A+1}", f"v_cvt_pk_bf16_f32 v{B}, v{B}, v{B+1}",
                  f"v_cvt_pk_bf16_f32 v{A+1}, v{A+2}, v{A+3}", f"v_cvt_pk_bf16_f32 v{B+1}, v{B+2}, v{B+3}")]
            sA += cv
            sw = [Item(Ins(f"v_permlane16_swap_b32 v{A}, v{B}", cost=2), e0, d0 - 1, deps=cv, lag=2),
                  Item(Ins(f"v_permlane16_swap_b32 v{A+1}, v{B+1}", cost=2), e0, d0 - 1, deps=cv, lag=2)]
            sB_ += sw
            q = aQ + 4 * ((2 * dg + e) * 3 + rt)
            for dst, src, dep in ((q, A, 0), (q + 2, B, 0), (q + 1, A + 1, 1), (q + 3, B + 1, 1)):
                sC_.append(Item(Ins(f"v_accvgpr_write_b32 a{dst}, v{src}"), e0, d0, deps=[sw[dep]]))

def kread(fi, ds, T):
    return Ins(f"ds_read_b128 {ar(FR(fi))}, v{vK} offset:{T*8448 + ds*64}", tag=f"f{fi}")
def kstep(j):
    d = KP(j + 1) - KP(j)
    return f"v_add_u32 v{vK}, {d}, v{vK}" if d > 0 else f"v_subrev_u32 v{vK}, {-d}, v{vK}"

def rdl(s, f):
    if s == 0: return -1 if f < 4 else 2 * f - 6
    return 24 * s + min(3 * (f & 6) - 7 + (2 if f >= 2 else 0), 7)

def phase1_and_qk0(P):
    M = []
    for s in range(28):
        for f in range(8):
            hi, t = f >> 2, f & 3
            dg, slot = unit_of(s, hi)
            for rt in range(3):
                acc = vr(ACC1[dg] + (t * 3 + rt) * 4)
                M.append(Ins(f"{MF} {acc}, {vr(FR1 + 4*((8*s+f) % NF1))}, {Xf(slot, rt)}, {'0' if slot == 0 else acc}"))
    n1 = len(M)
    for ds in range(8):
        for T in range(2):
            for rt in range(3):
                acc = vr(Sreg(0, rt, T))
                M.append(Ins(f"{MF} {acc}, {ar(FR(2*ds+T))}, {Qf(rt, ds)}, {'0' if ds == 0 else acc}"))
    sync, reads, dma, epi, epi2, epi3, misc = [], [], [], [], [], [], []
    plan = {}
    xrd_at = {k: max(XNEED[k] - 1, 0) for k in range(14)}
    xw_at = {u: xrd_at[2 * u] for u in range(7)}
    xfree = {u: xrd_at[2 * u + 1] + 2 for u in range(7)}
    last = -1
    for u in range(OPT["xfirst"], 7):
        last = max(xw_at[u] - OPT["xlead"], last + 1, xfree[0] if u == 6 else 0)
        assert last < xw_at[u]
        plan[last] = x_dma(u)
    if OPT["pretouch"]: plan.setdefault(OPT["ptat"], []).append([Ins(f"buffer_load_dword v{DUMMY+6}, v{vPT}, {srd(sPT)}, 0 offen", cost=2)])
    tiles = [(4, 0), (5, 0), (1, xfree[2]), (2, xfree[4]), (3, xfree[4]), (6, 11), (0, xfree[6])]
    if OPT["nostage"]: tiles = [t for t in tiles if t[0] < 4]
    nl = 4 * len(tiles)
    for i in range(nl):
        j, fr = tiles[i // 4]
        s0 = OPT["kvs"] + (i * (OPT["kend"] + 1 - OPT["kvs"])) // nl
        assert fr <= s0 < 25, (j, fr, s0)
        plan.setdefault(s0, []).extend(k_load(j, i % 4) if j in KREG else k_dma(j, [i % 4]))
    wr = []
    for j, s0 in ((4, 25), (5, 26), (6, 27)):
        if OPT["nostage"]: plan[s0] = k_dma(j); continue
        sync.append(Item(W(vm=f"K{j}"), 24 * s0 - 12, 24 * s0 - 12))
        for k in range(4):
            wr.append(Item(Ins(f"ds_write_b128 v{vKw}, {kreg(j, k)} offset:{KP(j) - KP(4) + k*1056}"), 24 * s0 - 11, 24 * s0 + 10))
    plan[28] = paced(STREAM2A(), 0, OPT["per2a"])
    for s in range(29):
        g0 = max(24 * s - 13, -1)
        if s < 28: tg = [f"wq{s}"] + [f"x{u}" for u in range(7) if xw_at[u] == s]
        else: tg = ["K1", "K0"]
        xs = []
        if s in (0, 6, 14, 28): stamp(xs, "a")
        sync.append(Item([W(vm=tg, lg=f"w{8*s-1}" if s > 0 else None), Ins("s_barrier")] + xs, g0, g0))
        if s < 28:
            def xrd(slot, d):
                u = slot >> 1
                for rt in range(3):
                    off = (0 if u == 5 else XU[u] - XU[0]) + rt * 2048
                    reads.append(Item(Ins(f"ds_read_b128 {Xf(slot, rt)}, v{(vXr2 if u == 5 else vXr) + (slot & 1)} offset:{off}", tag=f"xr{slot}"), g0, d))
            if s == 0: xrd(0, -1)
            for f in range(8):
                hi, t = f >> 2, f & 3
                F = 8 * s + f
                b = FR1 + 4 * (F % NF1)
                ws_ = wslot(s)
                off = WA[ws_] - (WA[2] if ws_ >= 2 else 0) + hi * 8192
                va = (vA2 if ws_ >= 2 else vA) + t
                reads.append(Item(Ins(f"ds_read_b64_tr_b16 {vr(b,2)}, v{va} offset:{off}", tag=f"w{F}x"), g0, rdl(s, f)))
                reads.append(Item(Ins(f"ds_read_b64_tr_b16 {vr(b+2,2)}, v{va} offset:{off+1024}", tag=f"w{F}"), g0, rdl(s, f)))
            for k in range(1, 14):
                if xrd_at[k] == s: xrd(k, 24 * s + 10)
            sync.append(Item(W(lg=f"w{8*s+1}"), 24 * s - 1, 24 * s - 1))
            sync.append(Item(W(lg=f"w{8*s+3}"), 24 * s + 5, 24 * s + 5))
        else:
            for fi in range(16):
                first = n1 + 3 * fi
                reads.append(Item(kread(fi, fi >> 1, fi & 1), max(first - 15, g0 + 1), first - (first - n1) % 6 - 6))
            for i in range(8):
                sync.append(Item(W(lg=f"f{2*i+1}"), n1 + 6 * i - 1, n1 + 6 * i - 1))
        grp = (wq_dma(s + NR - 1) if s + NR - 1 < 28 else []) + plan.get(s, [])
        if s == 0: spaced(dma, grp, 0, 10, 1.5, lo=-1)
        elif s < 28: spaced(dma, grp, 24 * s - 12, 24 * s + 11, OPT["wqsp"])
        else: spaced(dma, grp, 24 * s - 11, n1 + 46, 3)
    lim = {0: n1 - 2, 1: DONE[2] - 2, 2: n1 + 21, 3: n1 + 33}
    for dg in range(4):
        e0 = DONE[dg] + 2
        win = lambda u: (e0 + (0 if u < 3 else 3), lim[dg] - ((5 - u) * 8 if dg < 3 else (2 - u % 3) * 2 - (6 if u >= 3 else 0)))
        q_epilogue(dg, win, epi, epi2, epi3)
    txt = f"s_mov_b32 s{sCg}, s{sRot}\n"
    for i in range(7):
        misc += items(txt + f"s_lshl_b32 s{sTmp}, s{sCg}, 7\ns_add_u32 s{sWqOff+i}, s{sTmp}, s{sWoW}\ns_add_u32 s{sCg}, s{sCg}, 1", 24 * 24, n1)
        misc.append(Item([Ins(f"s_cmp_eq_u32 s{sCg}, 7"), Ins(f"s_cselect_b32 s{sCg}, 0, s{sCg}")], 24 * 24, n1)); txt = ""
    misc.append(Item(Ins(f"v_mov_b32 v{vT1}, 0x3f803f80"), n1 + 10, n1 + 44))
    for k in range(4): misc.append(Item(Ins(f"v_accvgpr_write_b32 a{aOnes+k}, v{vT1}"), n1 + 10, n1 + 45))
    misc.append(Item(Ins(kstep(0)), n1 + 43, n1 + 45))
    P += schedule(M, sync, [tighten(reads), tighten(dma), tighten(wr), tighten(epi2), tighten(epi3), tighten(epi), tighten(misc)], name="p1", verbose=True)

def init_path(P):
    for fi in range(4): P.append(kread(16 + fi, fi >> 1, fi & 1))
    P += [W(vm=["K2", "K3"]), Ins("s_barrier")]
    X = SPARE
    for rt in range(3):
        s = Sreg(0, rt, 0)
        L(P, f"v_max3_f32 v{X+rt}, v{s}, v{s+1}, v{s+2}\nv_max3_f32 v{X+rt}, v{X+rt}, v{s+3}, v{s+4}\n"
             f"v_max3_f32 v{X+rt}, v{X+rt}, v{s+5}, v{s+6}\nv_max_f32 v{X+rt}, v{X+rt}, v{s+7}")
    for sw in ("v_permlane32_swap_b32", "v_permlane16_swap_b32"):
        for rt in range(3): L(P, f"v_mov_b32 v{X+3+rt}, v{X+rt}")
        for rt in range(3): L(P, f"{sw} v{X+rt}, v{X+3+rt}")
        for rt in range(3): L(P, f"v_max_f32 v{X+rt}, v{X+rt}, v{X+3+rt}")
    for rt in range(3):
        for k in range(4): L(P, f"v_sub_f32 v{NEGM+4*rt+k}, 0, v{X+rt}")
    for rt in range(3):
        s = Sreg(0, rt, 0)
        for k in range(8): L(P, f"v_sub_f32 v{s+k}, v{s+k}, v{X+rt}")

def rescale(R, name, p, last):
    L(R, f"L_resc_{name}:\ns_nop 7\ns_nop 1\ns_mov_b32 s{sTmp}, 0xffff0000")
    X = SPARE
    for rt in range(3):
        s = Sreg(p, rt, 0); o = Sreg(1 - p, rt, 0)
        L(R, f"v_max3_f32 v{X}, v{s}, v{s+1}, v{s+2}\nv_max3_f32 v{X}, v{X}, v{s+3}, v{s+4}\n"
             f"v_max3_f32 v{X}, v{X}, v{s+5}, v{s+6}\nv_max3_f32 v{X}, v{X}, v{s+7}, 0")
        for sw in ("v_permlane32_swap_b32", "v_permlane16_swap_b32"):
            L(R, f"v_mov_b32 v{X+1}, v{X}\ns_nop 1\n{sw} v{X}, v{X+1}\nv_max_f32 v{X}, v{X}, v{X+1}")
        L(R, f"v_ceil_f32 v{X}, v{X}\nv_sub_f32 v{X+1}, 0, v{X}\nv_max_f32 v{X+1}, 0xc3480000, v{X+1}\nv_cvt_i32_f32 v{X+1}, v{X+1}\n"
             f"v_ldexp_f32 v{X+1}, 1.0, v{X+1}")
        for k in range(8): L(R, f"v_sub_f32 v{s+k}, v{s+k}, v{X}")
        for k in range(4): L(R, f"v_sub_f32 v{NEGM+4*rt+k}, v{NEGM+4*rt+k}, v{X}")
        regs = [PB + 12 * j + 4 * rt + k for j in range(14) for k in range(4)]
        if last: regs += [o + k for k in range(4)]
        else:
            for k in range(8): L(R, f"v_sub_f32 v{o+k}, v{o+k}, v{X}")
        for r in regs:
            L(R, f"v_lshlrev_b32 v{X+2}, 16, v{r}\nv_and_b32 v{X+3}, s{sTmp}, v{r}\nv_mul_f32 v{X+2}, v{X+2}, v{X+1}\n"
                 f"v_mul_f32 v{X+3}, v{X+3}, v{X+1}\nv_cvt_pk_bf16_f32 v{r}, v{X+2}, v{X+3}")
        for a in [aL + 4 * rt + k for k in range(4)]:
            L(R, f"v_accvgpr_read_b32 v{X+2}, a{a}\nv_mul_f32 v{X+2}, v{X+2}, v{X+1}\nv_accvgpr_write_b32 a{a}, v{X+2}")
    L(R, f"s_nop 1\ns_setpc_b64 s[{sRet}:{sRet+1}]")

def lmfma(j): return [Ins(f"{MF} {ar(aL+4*rt)}, {ar(aOnes)}, {vr(Preg(j, rt))}, {'0' if j == 0 else ar(aL+4*rt)}") for rt in range(3)]
def maxchain(p):
    s = SB[p]
    o = [s + 8 * rt + k for k in range(4) for rt in range(3)] + [s + 8 * rt + 4 + k for rt in range(3) for k in range(4)]
    r = [f"v_max3_f32 v{vMx}, v{o[0]}, v{o[1]}, v{o[2]}"]
    r += [f"v_max3_f32 v{vMx}, v{vMx}, v{o[k]}, v{o[k+1]}" for k in range(3, 23, 2)]
    return r + [f"v_max_f32 v{vMx}, v{vMx}, v{o[23]}", f"v_cmp_lt_f32 vcc, s{sT}, v{vMx}"]
def softmax_items(j, e, dl, soft, cvts, deps=()):
    p = j & 1
    for rt in range(3):
        s = Sreg(p, rt, 0)
        ex = [Item(Ins(f"v_exp_f32 v{s+k}, v{s+k}", cost=2), e, dl - 1, deps=deps) for k in range(8)]
        soft += ex
        cvts += [Item(Ins(f"v_cvt_pk_bf16_f32 v{Preg(j,rt)+k}, v{s+2*k}, v{s+2*k+1}"), e, dl, deps=ex[2*k:2*k+2]) for k in range(4)]

def block(P, R, j):
    p = j & 1
    FK = 16 * (j + 1)
    M = lmfma(j - 1) if j else []
    n0 = len(M)
    for ds in range(8):
        for T in range(2):
            for rt in range(3):
                acc = vr(Sreg(1 - p, rt, T))
                M.append(Ins(f"{MF} {acc}, {ar(FR(FK + 2*ds + T))}, {Qf(rt, ds)}, {vr(NEGM + 4*rt) if ds == 0 else acc}"))
    n = len(M)
    sync, reads, soft, cvts, dma, chk, misc = [], [], [], [], [], [], []
    deps = []
    if j:
        chk += [Item(Ins(x), 1 if k < 5 else 3, n0 + 8) for k, x in enumerate(maxchain(p))]
        br = Item([Ins(f"s_cbranch_vccnz L_rare_{j}"), Ins(f"L_ret_{j}:", cost=0)], n0 + 6, n0 + 9, deps=[chk[-1]])
        chk.append(br); deps = [br]
        L(R, f"L_rare_{j}:\ns_call_b64 s[{sRet}:{sRet+1}], L_resc_{p}\ns_branch L_ret_{j}")
    softmax_items(j, 0, n - 2, soft, cvts, deps)
    for fi in range(4, 16):
        first = n0 + 3 * fi
        reads.append(Item(kread(FK + fi, fi >> 1, fi & 1), max(first - 24, 0), first - (3 * fi) % 6 - 6))
    for i in range(8):
        g = n0 + 6 * i - 1
        sync.append(Item(W(lg=f"f{FK+2*i+1}"), g, g))
    if j < 14:
        reads.append(Item(Ins(kstep(j + 1)), n - 14, n - 11))
        for fi in range(4):
            reads.append(Item(kread(FK + 16 + fi, fi >> 1, fi & 1), n - 10, n - 5))
    b2 = OPT["bar2a"]
    if j and j % b2 == 0:
        need = [t for t in range(j + 2, min(j + 2 + b2, 16)) if t not in KREG or OPT["nostage"]]
        sync.append(Item([W(vm=[f"K{t}" for t in need] if need else None), Ins("s_barrier")], 0, 0))
    per = OPT["per2a"]
    i0, i1 = per * (j + 1), per * (j + 2)
    gl = (i1 - 1) // 4
    assert gl - 2 <= j - j % b2
    spaced(dma, paced(STREAM2A(), i0, i1), 8, n - 2, 40 // per)
    a, b, c = SPARE + 4, SPARE + 5, SPARE + 6
    if j == 0:
        dma += items(f"""
s_lshl_b32 s{sTmp2}, s3, 12
s_lshl_b32 s{sTmp}, s{sB}, 3
s_add_u32 s{sTmp2}, s{sTmp2}, s{sTmp}
v_lshlrev_b32 v{a}, 12, v0
v_add_u32 v{a}, s{sTmp2}, v{a}
v_mov_b32 v{b}, 1
buffer_atomic_add v{b}, v{a}, {srd(sDbg)}, 0 offen sc1""", 0, n - 1)
    if j == 2:
        misc += items(f"""
s_lshl_b32 s{sTmp}, s{sU}, 12
v_subrev_u32 v{a}, s{sTmp}, v{vA}
v_lshrrev_b32 v{b}, 5, v0
v_lshlrev_b32 v{b}, 10, v{b}
v_sub_u32 v{vA}, v{a}, v{b}
v_xor_b32 v{vA+1}, 32, v{vA}
v_xor_b32 v{vA+2}, 64, v{vA}
v_xor_b32 v{vA+3}, 0x60, v{vA}
s_lshl_b32 s{sTmp}, s{sU}, 6
v_xor_b32 v{vR[0]}, s{sTmp}, v{vA}
v_xor_b32 v{vR[1]}, s{sTmp}, v{vA+1}""", n0 + 10, n - 1)
    if j == 5:
        misc += items(f"""
s_lshl_b32 s{sTmp}, s{sB}, 3
v_lshlrev_b32 v{SPARE+10}, 12, v0
v_add_u32 v{SPARE+10}, s{sTmp}, v{SPARE+10}
buffer_load_dword v{SPARE+11}, v{SPARE+10}, {srd(sDbg)}, 0 offen sc1""", n0 + 10, n - 1)
        misc[-1].ins[0].tag = "cnt"
    if j == 13:
        txt = f"""
s_mul_i32 s{sSt}, s3, {21*8192}
s_lshl_b32 s{sTmp2}, s{sH}, 13
s_add_u32 s{sHo}, s{sSt}, s{sTmp2}
s_lshl_b32 s{sTmp2}, s{sH}, 10
s_add_u32 s{sSt}, s{sSt}, s{sTmp2}
"""
        for i in range(7):
            txt += f"s_add_u32 s{sTmp2}, s{sTmp2}, 1024\ns_and_b32 s{sTmp2}, s{sTmp2}, 0x1fff\ns_add_u32 s{sSrc+i}, s{sTmp2}, s{sHo}\n"
        misc += items(txt, n0 + 10, n - 1)
    P += schedule(M, sync, [tighten(reads), tighten(chk), tighten(soft), tighten(cvts), tighten(dma), tighten(misc)],
                  name=f"blk{j}", verbose=(j in (0, 1, 2, 8, 14)))

def publish(val):
    return [[Ins(f"v_mov_b32 v{vT}, {val}")], [Ins(f"buffer_store_dword v{vT}, v{vFs}, {srd(sFl)}, 0 offen sc1", cost=2)]]
def unit_loads(k, dst, voff):
    return [Ins(f"buffer_load_dwordx4 {dst(i)}, v{voff}, {srd(sWs)}, s{sSrc+i} offen {OPT['ldf'].replace('_', ' ')}", cost=2, tag=f"u{k}s{i}") for i in range(7)]

def phase2b(P, R):
    P += lmfma(14)
    P += [W(vm="cnt"), Ins(f"v_readfirstlane_b32 s{sOk}, v{SPARE+11}"), Ins("s_nop 3")]
    L(P, "\n".join(maxchain(1)))
    L(P, f"s_cmp_lt_u32 s{sOk}, 8\ns_cbranch_scc1 L_clr_wait\nL_clr_ok:\ns_cbranch_vccnz L_rare_15\nL_ret_15:")
    L(R, f"L_rare_15:\ns_call_b64 s[{sRet}:{sRet+1}], L_resc_last\ns_branch L_ret_15")
    F0 = 16 * 16
    N = len(ITEMS)
    M = []; start = []; frag0 = []; order = []
    nf = 0
    def ofrag(c, i): return vr(OF3 + 4 * i) if c == 3 else ar(aOF + 4 * i)
    nV3 = ITEMS.index(("V", 3, 3))
    for n, (t, c, i) in enumerate(ITEMS):
        start.append(len(M)); frag0.append(nf)
        if t == "V":
            dtmajor = i == 3 or n == 4
            fl = [(dt, ks) for dt in range(4) for ks in range(4)] if dtmajor else [(dt, ks) for ks in range(4) for dt in range(4)]
            for f, (dt, ks) in enumerate(fl):
                for rt in range(3):
                    acc = ar(aT0 + 4 * rt) if (c == 0 and dt == 3) else vr(Otile(dt, rt))
                    M.append(Ins(f"{MF} {acc}, {ar(FR(F0 + nf + f))}, {vr(Preg(4*i + ks, rt))}, {'0' if (i == 0 and ks == 0) else acc}"))
            if n == 2: M += lmfma(15)
        else:
            fl = [(sg, tt) for sg in range(4) for tt in range(2)]
            for f, (sg, tt) in enumerate(fl):
                for rt in range(3):
                    acc = ar(aOut + 24 * i + 8 * rt + 4 * tt)
                    M.append(Ins(f"{MF} {acc}, {ar(FR(F0 + nf + f))}, {ofrag(c, 3 * sg + rt)}, {'0' if (c == 0 and sg == 0) else acc}"))
        order.append(fl); nf += len(fl)
    start.append(len(M))
    n_all = len(M)
    groups = []
    n = 0
    while n < N:
        run = [k for k in range(n + 1, N) if all(ITEMS[x][0] == "W" for x in range(n + 1, k + 1))]
        if ITEMS[n][0] == "V": g = [n] + (run[:2] if (OPT["big"] and n >= 4) else [])
        elif n > nV3: g = [n] + run[:OPT["fgrp"] - 1]
        else: g = [n] + (run[:2] if len(run) == 2 else run[:1])
        groups.append(g); n += len(g)
    sync, reads, dma, nrm, epi, xch, soft, cvts, oxr = [], [], [], [], [], [], [], [], []
    blobs = {}
    half = {"V": 0, "W": 0}
    assert (16 * OPT["per2a"]) % 4 == 0
    todo_left = list(range(4 * OPT["per2a"] - 9, RB))
    for gi, grp in enumerate(groups):
        g0 = max(start[grp[0]] - 13, -1)
        prev = groups[gi - 1] if gi else None
        lastf = F0 + frag0[grp[0]] - 1
        sync.append(Item([W(vm=f"n{grp[-1]}", lg=f"w{lastf}" if gi else None), Ins("s_barrier")], g0, g0))
        for n in grp:
            t, c, i = ITEMS[n]
            hf = (n % RB) >> 2
            regs = [vA + k for k in range(4)] if t == "V" else vR
            e = max(start[n] - 13, -1)
            if half[t] != hf:
                for r in regs: reads.append(Item(Ins(f"v_xor_b32 v{r}, 0x10000, v{r}"), e - 6, e - 1))
                half[t] = hf
            for f, x in enumerate(order[n]):
                F = F0 + frag0[n] + f
                if t == "V": va, off = vA + x[0], x[1] * 4096
                else: va, off = vR[x[1]], x[0] * 4096
                off += (n % 4) * 16384
                first = start[n] + 3 * f
                nxt = start[n + 1] - 13 - 4
                d = min(first - 3 * (f & 1) - 7 + (2 if f >= 2 else 0), nxt)
                ee = max(e, first - 3 * NF2 + 3)
                if gi == 0: ee = -1 if f < 4 else 0; d = -1 if f < 4 else max(d, 2 * f - 6)
                reads.append(Item(Ins(f"ds_read_b64_tr_b16 {ar(FR(F),2)}, v{va} offset:{off}", tag=f"w{F}x"), ee, d))
                reads.append(Item(Ins(f"ds_read_b64_tr_b16 {ar(FR(F)+2,2)}, v{va} offset:{off+2048}", tag=f"w{F}"), ee, d))
                if f % 2 == 0: sync.append(Item(W(lg=f"w{F+1}"), first - 1, first - 1)) if not (first - 1 in [start[k] - 13 for k in range(N) if k in [x_[0] for x_ in groups]]) else None
        todo = todo_left + [k + RB for k in (prev or []) if k + RB < N]
        nmax = 2 if grp[0] < 8 else 9
        todo, todo_left = todo[:nmax], todo[nmax:]
        assert all(k > grp[-1] for k in todo + todo_left), (grp, todo, todo_left)
        span = start[grp[-1] + 1] - start[grp[0]]
        its = [x for k in todo for x in item_dma(k)]
        if its: spaced(dma, its, g0 + 2, g0 + span - 1, max(3, min(8, (span - 4) / (4 * len(todo)))), lo=max(g0 - 20, 0))
    softmax_items(15, 0, start[3] - 6, soft, cvts)
    nrm += items(f"""
s_mul_i32 s{sTmp}, s{sU+1}, 12288
s_add_u32 s{sTmp}, s{sTmp}, {X1}
v_add_u32 v{vXr_}, s{sTmp}, v{vL16}
s_mul_i32 s{sTmp}, s{sU}, 6144
v_add_u32 v{vXw}, s{sTmp}, v{vXr_}""", start[2] + 8, start[3])
    for rt in range(3):
        nrm += [Item(Ins(f"v_accvgpr_read_b32 v{vRl+rt}, a{aL+4*rt}"), start[3] + 6, start[3] + 24),
                Item(Ins(f"v_rcp_f32 v{vRl+rt}, v{vRl+rt}", cost=2), start[3] + 6, start[3] + 26)]
    def norm(c, kk, rt):
        A, B = Otile(2 * kk, rt), Otile(2 * kk + 1, rt)
        r = []
        if c == 0 and kk == 1: r += [f"v_accvgpr_read_b32 v{B+k}, a{aT0+4*rt+k}" for k in range(4)]
        r += [f"v_mul_f32 v{x+k}, v{x+k}, v{vRl+rt}" for x in (A, B) for k in range(4)]
        r += [f"v_cvt_pk_bf16_f32 v{A}, v{A}, v{A+1}", f"v_cvt_pk_bf16_f32 v{A+1}, v{A+2}, v{A+3}",
              f"v_cvt_pk_bf16_f32 v{A+2}, v{B}, v{B+1}", f"v_cvt_pk_bf16_f32 v{A+3}, v{B+2}, v{B+3}"]
        return r, f"ds_write_b128 v{vXw}, {vr(A)} offset:{(kk*3+rt)*1024}"
    for c in range(4):
        n = ITEMS.index(("V", c, 3))
        s0, end = start[n], start[n + 1] - 1
        oread = [Ins(f"ds_read_b128 {ofrag(c, i)}, v{vXr_} offset:{i*1024}", tag=f"ox{c}_{i//3}") for i in range(12)]
        if c == 0:
            for kk in range(2):
                for rt in range(3):
                    r, w = norm(c, kk, rt)
                    e = s0 + 30 if kk == 0 else end + 7
                    d = (end - 2 + rt) if kk == 0 else (end + 22 + rt)
                    nrm += [Item(Ins(x), e, d - 1) for x in r] + [Item(Ins(w, tag=f"xw{c}"), e, d)]
            xs = []; stamp(xs, "m"); blobs[end] = xs
            gx = end + 30
        else:
            gx = start[n + 3] - 1
            for kk in range(2):
                for rt in range(3):
                    r, w = norm(c, kk, rt)
                    e = s0 + 30 if kk == 0 else end + 7
                    d = gx - 6 - (5 - 3 * kk - rt) * 7
                    nrm += [Item(Ins(x), e, d - 1) for x in r] + [Item(Ins(w, tag=f"xw{c}"), e, d)]
        sync.append(Item([W(lg=f"xw{c}"), Ins("s_barrier")], gx, gx))
        use = start[ITEMS.index(("W", c, 0))]
        for i, x in enumerate(oread): oxr.append(Item(x, gx, use + 6 * (i // 3) - 8))
        for sg in range(4): sync.append(Item(W(lg=f"ox{c}_{sg}"), use + 6 * sg - 2, use + 6 * sg - 2))
        if c == 3: xs = []; stamp(xs, "m"); blobs[end] = xs
    ef = start[nV3 + 1] + 1
    a, b, c_ = EP, EP + 1, EP + 2
    xch += items(f"""
v_lshlrev_b32 v{vFl}, 2, v0
s_lshl_b32 s{sOwn}, 1, s{sH}
s_lshl_b32 s{sTmp}, s{sH}, 2
v_lshlrev_b32 v{vFs}, 12, v0
v_add_u32 v{vFs}, s{sTmp}, v{vFs}
v_lshrrev_b32 v{a}, 4, v0
v_bfe_u32 v{b}, v0, 2, 2
v_cmp_eq_u32 vcc, v{a}, v{b}
v_and_b32 v{a}, 1, v0
v_lshlrev_b32 v{a}, 4, v{a}
v_mov_b32 v{b}, 0x3f80
v_lshlrev_b32 v{a}, v{a}, v{b}
v_cndmask_b32 v{a}, 0, v{a}, vcc
v_and_b32 v{b}, 2, v0
v_cmp_eq_u32 vcc, 0, v{b}
v_mov_b32 v{vSel+2}, 0
v_mov_b32 v{vSel+3}, 0
v_cndmask_b32 v{vSel}, 0, v{a}, vcc
v_sub_u32 v{vSel+1}, v{a}, v{vSel}
v_mov_b32 v{vSel+4}, 0
v_mov_b32 v{vSel+5}, 0
v_mov_b32 v{vSel+6}, v{vSel}
v_mov_b32 v{vSel+7}, v{vSel+1}""", ef, start[ITEMS.index(("W", 3, 0)) + 1] + 4)
    tail = []
    for pos in range(7):
        n = ITEMS.index(("W", 3, pos))
        e0 = start[n + 1] + 6
        nn = ITEMS.index(("W", 3, pos + 1)) + 1 if pos < 6 else None
        for rt in range(3):
            idx = 3 * pos + rt
            b = EP + 8 * (idx & 1)
            own = OWN + 4 * (idx >> 3)
            seq = [[Ins(f"v_accvgpr_read_b32 v{b+k}, a{aOut + 24*pos + 8*rt + k}")] for k in range(8)]
            seq += [[Ins(f"s_mov_b32 s{sTmp}, s{sSt}")], [Ins(f"s_add_u32 s{sSt}, s{sSt}, 8192")]]
            seq += [[Ins(f"v_cvt_pk_bf16_f32 v{b+k}, v{b+2*k}, v{b+2*k+1}")] for k in range(4)]
            seq += [[Ins(f"s_cmp_eq_u32 s{sH}, {idx & 7}"), Ins(f"s_cbranch_scc1 L_cap_{idx}"), Ins(f"L_capr_{idx}:", cost=0)]]
            L(R, f"L_cap_{idx}:\n" + "\n".join(f"v_mov_b32 v{own+k}, v{b+k}" for k in range(4)) + f"\ns_mov_b32 s{sTmp}, 0x10000000\ns_branch L_capr_{idx}")
            seq += [[Ins(f"buffer_store_dwordx4 {vr(b)}, v{vL16}, {srd(sWs)}, s{sTmp} offen {OPT['stf'].replace('_', ' ')}", cost=2, tag=f"st{pos}")]]
            if pos < 6:
                f0 = start[ITEMS.index(("W", 3, 0)) + 1] + 6
                for x in seq: epi.append(Item(x, e0, max(f0 + (idx + 1) * (n_all - f0) // 18, e0 + 8 * (rt + 1))))
            else: tail += seq
    if OPT["early"]:
        gA = start[ITEMS.index(("W", 3, 5))] + 2
        sync.append(Item(W(vm="st2"), gA, gA))
        pa = publish(1)
        xch += [Item(pa[0], gA - 4, gA), Item(pa[1], gA + 1, gA + 3)]
        xch.append(Item(Ins(f"buffer_load_dword v{vPoll}, v{vFl}, {srd(sFl)}, 0 offen sc1", cost=2, tag="fA"), n_all - 12, n_all - 8))
    P += schedule(M, sync, [tighten(reads), tighten(oxr), tighten(dma), tighten(soft), tighten(cvts), tighten(nrm), tighten(xch), tighten(epi)],
                  name="p2b", verbose=True, blobs=blobs)
    L(P, "s_nop 7")
    for x in tail: P += x
    stamp(P, "mt")
    P.append(W(vm="st5"))
    for x in publish(2): P += x
    if OPT["early"]:
        P.append(W(vm="fA"))
        L(P, f"v_cmp_le_u32 vcc, 1, v{vPoll}")
        P += unit_loads(0, lambda i: vr(88 + 4 * i), vL16)
        L(P, f"s_or_b32 s{sOk}, vcc_lo, s{sOwn}")
    else: L(P, f"s_mov_b32 s{sOk}, 0")
    P.append(W(vm="st6"))
    for x in publish(3): P += x
    stamp(P, "t")

NPOLL = 4
def poll(P, name, thr):
    n0 = len(P)
    ld = lambda k: f"buffer_load_dword v{vPoll+k}, v{vFl}, {srd(sFl)}, 0 offen sc1"
    for k in range(NPOLL - 1): L(P, ld(k) + f"\ns_sleep {OPT['sleep']}")
    L(P, f"L_{name}:")
    for k in range(NPOLL):
        L(P, f"""
{ld((k + NPOLL - 1) % NPOLL)}
s_waitcnt vmcnt({NPOLL - 1})
v_cmp_le_u32 vcc, {thr}, v{vPoll+k}
s_nop 1
s_or_b32 s{sTmp}, vcc_lo, s{sOwn}
s_cmp_eq_u32 s{sTmp}, 0xff
s_cbranch_scc1 L_{name}_ok
s_sleep {OPT['sleep']}
""")
    L(P, f"s_branch L_{name}")
    for i in P[n0:]:
        if i.kind != "label": i.kind = "raw"
    L(P, f"L_{name}_ok:")

def unit_off(P, k):
    L(P, f"""
s_add_u32 s{sTmp}, s{sH}, {8*k}
s_mul_i32 s{sTmp2}, s{sTmp}, 11
s_lshr_b32 s{sTmp2}, s{sTmp2}, 5
s_mul_i32 s{sCg}, s{sTmp2}, 3
s_sub_u32 s{sTmp}, s{sTmp}, s{sCg}
s_mul_i32 s{sTmp}, s{sTmp}, {16*896}
s_add_u32 s{sTmp2}, s{sTmp2}, s{sRot}
s_sub_u32 s{sCg}, s{sTmp2}, 7
s_cselect_b32 s{sTmp2}, s{sTmp2}, s{sCg}
s_lshl_b32 s{sTmp2}, s{sTmp2}, 7
s_add_u32 s{sTo+k}, s{sTmp}, s{sTmp2}
""")
def reduce_unit(P, k, src, younger):
    A = SB[0] + 8 * k
    own = vr(OWN + 4 * k)
    L(P, f"{MF} {vr(A)}, {vr(vSel)}, {own}, 0\n{MF} {vr(A+4)}, {vr(vSel+4)}, {own}, 0")
    for i in range(7):
        P.append(W(vm=6 - i + younger))
        L(P, f"{MF} {vr(A)}, {vr(vSel)}, {src(i)}, {vr(A)}\n{MF} {vr(A+4)}, {vr(vSel+4)}, {src(i)}, {vr(A+4)}")
def pack_unit(P, k):
    A = SB[0] + 8 * k
    for r in range(4): L(P, f"v_cvt_pk_bf16_f32 v{A+r}, v{A+2*r}, v{A+2*r+1}")
    L(P, f"s_nop 1\nv_permlane16_swap_b32 v{A}, v{A+2}\nv_permlane16_swap_b32 v{A+1}, v{A+3}")
def store_unit(P, k, vout):
    L(P, f"buffer_store_dwordx4 {vr(SB[0] + 8 * k)}, v{vout}, {srd(sOut)}, s{sTo+k} offen {OPT['out_flag']}")

def final(P):
    vo, v1, v2 = 10, 11, 12
    U = [88, 116, 144]
    L(P, f"""
v_add_u32 v{v1}, 0x10000, v{vL16}
v_add_u32 v{v2}, 0x20000, v{vL16}
v_and_b32 v{vo}, 15, v0
v_mul_u32_u24 v{vo}, 896, v{vo}
v_bfe_u32 v13, v0, 4, 1
v_lshl_add_u32 v{vo}, v13, 5, v{vo}
v_lshrrev_b32 v13, 5, v0
v_lshl_add_u32 v{vo}, v13, 4, v{vo}
s_mul_i32 s{sTmp}, s{sU+1}, {48*896}
s_lshl_b32 s{sTmp2}, s{sU}, 6
s_add_u32 s{sTmp}, s{sTmp}, s{sTmp2}
v_add_u32 v{vo}, s{sTmp}, v{vo}
""")
    src = lambda k: (lambda i: vr(U[k] + 4 * i))
    voff = [vL16, v1, v2]
    for k in range(3): unit_off(P, k)
    L(P, f"s_sub_u32 s{sHm}, s{sH}, 2\ns_cmp_lt_u32 s{sHm}, 3\ns_cselect_b32 s{sHm}, 3, 2")
    L(P, f"s_cmp_eq_u32 s{sOk}, 0xff\ns_cbranch_scc0 L_late0")
    reduce_unit(P, 0, src(0), 1)
    L(P, "s_nop 6"); pack_unit(P, 0)
    L(P, "L_late0:")
    poll(P, "pB", f"s{sHm}")
    stamp(P, "mt")
    L(P, f"s_cmp_eq_u32 s{sOk}, 0xff\ns_cbranch_scc1 L_have0\ns_cmp_gt_u32 s{sH}, 4\ns_cbranch_scc1 L_v01")
    def path(ks, name, done0):
        Q = []
        for k in ks: Q += unit_loads(k, src(k), voff[k])
        nst = 0
        if done0: store_unit(Q, 0, vo); nst = 1
        for n_, k in enumerate(ks):
            reduce_unit(Q, k, src(k), 7 * (len(ks) - 1 - n_) + nst)
            if n_:
                pack_unit(Q, ks[n_ - 1]); store_unit(Q, ks[n_ - 1], vo); nst += 1
        L(Q, "s_nop 6"); pack_unit(Q, ks[-1]); store_unit(Q, ks[-1], vo)
        resolve_waits(Q); G.errs += check(Q, name)
        for i in Q: i.kind = "raw"
        return Q
    P += path([0, 1, 2], "v012", False); L(P, "s_branch L_fin\nL_v01:")
    P += path([0, 1], "v01", False); L(P, f"s_branch L_fin\nL_have0:\ns_cmp_gt_u32 s{sH}, 4\ns_cbranch_scc1 L_v1")
    P += path([1, 2], "v12", True); L(P, "s_branch L_fin\nL_v1:")
    P += path([1], "v1", True)
    L(P, "L_fin:")
    if OPT["amp"] >= 0:
        stamp(P, OPT["stamps"][0])
        j = OPT["amp"] or G.nstamp - 1
        L(P, f"""
s_sub_u32 s{sTmp}, s{STAMPS[j]}, s{STAMPS[0]}
s_mul_i32 s{sTmp}, s{sTmp}, {OPT["ampk"]}
L_amp:
s_memrealtime s[92:93]
s_waitcnt lgkmcnt(0)
s_sub_u32 s92, s92, s{STAMPS[G.nstamp-1]}
s_cmp_lt_u32 s92, s{sTmp}
s_cbranch_scc1 L_amp
""")
        return
    if OPT["stamps"]:
        stamp(P, OPT["stamps"][0])
        ns = G.nstamp
        L(P, f"""
s_waitcnt vmcnt(0)
s_cmp_lg_u32 s3, 0
s_cbranch_scc1 L_end
s_mov_b32 s{sWs}, s18
s_and_b32 s{sWs+1}, s19, 0xffff
s_mov_b32 s{sWs+2}, 0x10000000
s_mul_i32 s{sTmp}, s2, {ns*16}
s_add_u32 s{sTmp}, s{sTmp}, 0x8000000
v_mov_b32 v10, s{sTmp}
s_mov_b64 exec, 1
v_mov_b32 v17, 0
v_mov_b32 v19, 0
""")
        for j in range(ns):
            L(P, f"v_mov_b32 v16, s{STAMPS[j]}\nv_mov_b32 v18, s{STAMPS[j]+1}\n"
                 f"buffer_store_dwordx4 v[16:19], v10, {srd(sWs)}, 0 offen offset:{16*j}\ns_nop 1")

def clr_wait(R):
    L(R, f"""
L_clr_wait:
s_sleep 4
buffer_load_dword v{SPARE+11}, v{SPARE+10}, {srd(sDbg)}, 0 offen sc1
s_waitcnt vmcnt(0)
v_readfirstlane_b32 s{sOk}, v{SPARE+11}
s_nop 1
s_cmp_lt_u32 s{sOk}, 8
s_cbranch_scc1 L_clr_wait
s_branch L_clr_ok
""")

def main():
    P = []; R = []
    prologue(P)
    phase1_and_qk0(P)
    stamp(P, "m")
    init_path(P)
    for j in range(15): block(P, R, j)
    stamp(P, "m")
    phase2b(P, R)
    final(P)
    resolve_waits(P)
    errs = check(P, "main") + G.errs
    for nm, p, last in (("0", 0, False), ("1", 1, False), ("last", 1, True)):
        Q = []; rescale(Q, nm, p, last); errs += check(Q, "resc"); R += Q
    clr_wait(R)
    for e in errs[:30]: print("HAZARD", e, file=sys.stderr)
    txt = f"""; fused GQA block: Q projection, attention, output projection, cross-workgroup reduce
; @launch grid=(256,1,1) block=(256,1,1) lds=163840
.amdgcn_target "amdgcn-amd-amdhsa--gfx950"
.text
.globl {KN}
.p2align 8
.type {KN},@function
{KN}:
"""
    txt += "\n".join(i.txt for i in P)
    txt += "\nL_end:\ns_endpgm\n"
    txt += "\n".join(i.txt for i in R)
    txt += f"""
s_endpgm
.section .rodata,"a"
.p2align 6
.amdhsa_kernel {KN}
  .amdhsa_next_free_vgpr 512
  .amdhsa_next_free_sgpr 102
  .amdhsa_accum_offset 256
  .amdhsa_group_segment_fixed_size 0
  .amdhsa_kernarg_size 64
  .amdhsa_user_sgpr_count 2
  .amdhsa_user_sgpr_kernarg_segment_ptr 1
  .amdhsa_system_sgpr_workgroup_id_x 1
  .amdhsa_float_denorm_mode_32 3
.end_amdhsa_kernel
"""
    open(sys.argv[1], "w").write(txt)
    print("instructions:", len(P), "stamps:", G.nstamp, "hazards:", len(errs), file=sys.stderr)

main()
```
